```python
import torch

def _softmax(x, axis=-1):
    return torch.softmax(x, dim=axis)
def _gelu(x):
    return torch.nn.functional.gelu(x, approximate="tanh")
def _silu(x):
    return torch.nn.functional.silu(x)
def _sigmoid(x):
    return torch.sigmoid(x)
def _layernorm(x, axis=-1, eps=1e-5):
    m = x.mean(dim=axis, keepdim=True)
    v = x.var(dim=axis, keepdim=True, unbiased=False)
    return (x - m) / torch.sqrt(v + eps)
def _scatter_add(tgt, idx, src, axis=0):
    return tgt.clone().index_add_(axis, idx, src)
def _segment_sum(src, seg, n):
    out = torch.zeros((n,) + src.shape[1:], dtype=src.dtype)
    return out.index_add_(0, seg, src)
def _pad(x, pw):
    flat = tuple(v for pair in reversed(pw) for v in pair)
    return torch.nn.functional.pad(x, flat)

kernel_name = 'concat_heads__spectral_fnet__sliding_block__prompt'

def setup_inputs():

    _w = (lambda a: (lambda t: t.to(torch.bfloat16) if t.is_floating_point() else t)(torch.as_tensor(a)))
    def _A_setup():
        B, S, D = 1, 2048, 640
        ns = torch.arange(S)[:, None] * torch.arange(S)[None, :]
        nd = torch.arange(D)[:, None] * torch.arange(D)[None, :]
        Ws_re = torch.cos(-2.0 * torch.pi * ns / S).to(float)
        Ws_im = torch.sin(-2.0 * torch.pi * ns / S).to(float)
        Wd_re = torch.cos(-2.0 * torch.pi * nd / D).to(float)
        Wd_im = torch.sin(-2.0 * torch.pi * nd / D).to(float)
        return {
            "x": _w((lambda *s: torch.randn(*s, dtype=torch.bfloat16) * 0.05)(B, S, D)),
            "dft_seq_re": _w(Ws_re),
            "dft_seq_im": _w(Ws_im),
            "dft_hid_re": _w(Wd_re),
            "dft_hid_im": _w(Wd_im),
        }
    _A_in = _A_setup()

    def _B_setup():
        B, S, D = 1, 2048, 640
        return {
            "x": _w((lambda *s: torch.randn(*s, dtype=torch.bfloat16) * 0.2)(B, S, D)),
            "wqkv": _w((lambda *s: torch.randn(*s, dtype=torch.bfloat16) * 0.8)(D, 3 * D)),
            "wo": _w((lambda *s: torch.randn(*s, dtype=torch.bfloat16) * 0.2)(D, D)),
        }
    _B_in = _B_setup()

    return {
        "A_x": _A_in["x"],
        "A_dft_seq_re": _A_in["dft_seq_re"],
        "A_dft_seq_im": _A_in["dft_seq_im"],
        "A_dft_hid_re": _A_in["dft_hid_re"],
        "A_dft_hid_im": _A_in["dft_hid_im"],
        "B_x": _B_in["x"],
        "B_wqkv": _B_in["wqkv"],
        "B_wo": _B_in["wo"],
    }

def reference(A_x, A_dft_seq_re, A_dft_seq_im, A_dft_hid_re, A_dft_hid_im, B_x, B_wqkv, B_wo):
    def _A_ref(x, dft_seq_re, dft_seq_im, dft_hid_re, dft_hid_im):
        a = torch.einsum("bsd,ed->bse", x, dft_hid_re)
        b = torch.einsum("bsd,ed->bse", x, dft_hid_im)
        y = torch.einsum("ts,bse->bte", dft_seq_re, a) - torch.einsum("ts,bse->bte", dft_seq_im, b)
        return y

    def _B_ref(x, wqkv, wo):
        B, S, D = x.shape
        H = 32; Dh = D // H; W = 256
        qkv = (lambda x, *d: x.permute(*d))((x @ wqkv).reshape(B, S, 3, H, Dh), 2, 0, 3, 1, 4)
        q, k, v = qkv[0], qkv[1], qkv[2]
        scores = torch.einsum("bhqd,bhkd->bhqk", q, k) * (Dh ** -0.5)
        idx = torch.arange(S)
        mask = (idx[:, None] - idx[None, :] >= 0) & (idx[:, None] - idx[None, :] < W)
        scores = torch.where(mask[None, None], scores, -1e9)
        p = _softmax(scores, axis=-1)
        o = torch.einsum("bhqk,bhkd->bhqd", p, v)
        return (lambda x, *d: x.permute(*d))(o, 0, 2, 1, 3).reshape(B, S, D) @ wo

    a = _A_ref(A_x, A_dft_seq_re, A_dft_seq_im, A_dft_hid_re, A_dft_hid_im)
    b = _B_ref(B_x, B_wqkv, B_wo)
    return torch.concatenate([a, b], axis=-1)
```

```python
class Asm:
    def __init__(self):
        self.L = []
        self.uid = 0
    def __call__(self, s):
        for ln in s.split("\n"):
            ln = ln.strip()
            if ln:
                self.L.append(ln if ln.endswith(":") or ln.startswith(".") or ln.startswith(";") else "    " + ln)
    def label(self, base):
        self.uid += 1
        return f"L_{base}_{self.uid}"
    def text(self):
        return "\n".join(self.L) + "\n"
    def srd(self, s, lo, hi, nbytes):
        self(f"s_mov_b32 s{s}, s{lo}\ns_mov_b32 s{s+1}, s{hi}\ns_mov_b32 s{s+2}, {nbytes}\ns_mov_b32 s{s+3}, 0x20000")

def v(a, n=1):
    return f"v{a}" if n == 1 else f"v[{a}:{a+n-1}]"
def s(a, n=1):
    return f"s{a}" if n == 1 else f"s[{a}:{a+n-1}]"
def acc(a, n=1):
    return f"a{a}" if n == 1 else f"a[{a}:{a+n-1}]"

def kernel_begin(A, name):
    A(f".globl {name}\n.p2align 8\n.type {name},@function\n{name}:")

def kernel_desc(name, vgpr, sgpr=96, accum=None):
    accum = accum if accum is not None else (vgpr + 3) // 4 * 4
    return f""".amdhsa_kernel {name}
  .amdhsa_next_free_vgpr {vgpr}
  .amdhsa_next_free_sgpr {sgpr}
  .amdhsa_accum_offset {accum}
  .amdhsa_group_segment_fixed_size 0
  .amdhsa_kernarg_size 88
  .amdhsa_user_sgpr_count 2
  .amdhsa_user_sgpr_kernarg_segment_ptr 1
  .amdhsa_system_sgpr_workgroup_id_x 1
.end_amdhsa_kernel
"""

KA = dict(Ax=0, Sre=8, Sim=16, Dre=24, Dim=32, Bx=40, Wqkv=48, Wo=56, out=64, dbg=72, ws=80)
NB = dict(Ax=2621440, Sre=8388608, Sim=8388608, Dre=819200, Dim=819200, Bx=2621440, Wqkv=2457600, Wo=819200,
          out=5242880, dbg=256, ws=268435456)
```

```python
import sys, math
from lib import *

QKV_OFF = 0
O_OFF = 8 << 20
AB_OFF = 12 << 20
QSCALE = 20 ** -0.5 * math.log2(math.e)
import struct
def f2u(x): return struct.unpack("<I", struct.pack("<f", x))[0]

def gemm(A, name, Mt, Nt, segs, out):
    kernel_begin(A, name)
    Lend = A.label("end"); Lload = A.label("load")
    A(f"s_cmp_ge_u32 s2, {Mt*Nt}\ns_cbranch_scc1 {Lend}")
    for i, sg in enumerate(segs):
        A(f"s_load_dwordx2 s[{40+4*i}:{41+4*i}], s[0:1], {KA[sg[0]]}")
        A(f"s_load_dwordx2 s[{42+4*i}:{43+4*i}], s[0:1], {KA[sg[3]]}")
    A(f"s_load_dwordx2 s[56:57], s[0:1], {KA[out['buf']]}")
    A("v_lshrrev_b32 v1, 6, v0\nv_and_b32 v2, 63, v0\ns_nop 0\nv_readfirstlane_b32 s4, v1")
    A("s_and_b32 s5, s2, 15\ns_lshr_b32 s6, s2, 4")
    A("s_waitcnt lgkmcnt(0)")
    A.srd(8, 40, 41, NB[segs[0][0]]); A.srd(12, 42, 43, NB[segs[0][3]]); A.srd(16, 56, 57, NB[out['buf']])
    if len(segs) > 1:
        A.srd(20, 44, 45, NB[segs[1][0]]); A.srd(24, 46, 47, NB[segs[1][3]])
    nst = sum(sg[6] for sg in segs) // 64
    A(f"s_cmp_ge_u32 s4, 4\ns_cbranch_scc1 {Lload}")
    A("s_and_b32 s28, s4, 1\ns_lshr_b32 s29, s4, 1")
    A("v_and_b32 v3, 31, v2\nv_lshrrev_b32 v4, 5, v2")
    A("v_lshrrev_b32 v5, 1, v3\nv_and_b32 v5, 7, v5")
    A("s_lshl_b32 s30, s28, 13")
    A("v_lshlrev_b32 v6, 7, v3\nv_add_u32 v6, s30, v6")
    for st in range(4):
        A(f"v_add_u32 v7, {2*st}, v4\nv_xor_b32 v7, v7, v5\nv_lshlrev_b32 v7, 4, v7\nv_add_u32 v{10+st}, v6, v7")
    A("v_and_b32 v5, 15, v2\nv_lshrrev_b32 v5, 2, v5")
    A("v_lshlrev_b32 v6, 3, v4\nv_add_u32 v6, v6, v5\nv_lshlrev_b32 v6, 8, v6")
    A("v_and_b32 v7, 1, v2\nv_lshlrev_b32 v7, 3, v7\nv_add_u32 v6, v6, v7\nv_add_u32 v6, 16384, v6")
    A("v_lshrrev_b32 v7, 4, v2\nv_and_b32 v7, 1, v7\nv_lshlrev_b32 v7, 1, v7")
    A("v_lshrrev_b32 v8, 1, v2\nv_and_b32 v8, 1, v8\nv_add_u32 v7, v7, v8")
    A("s_lshl_b32 s30, s29, 3\nv_add_u32 v7, s30, v7\nv_lshlrev_b32 v5, 2, v5")
    for t in range(2):
        A(f"v_add_u32 v8, {4*t}, v7\nv_xor_b32 v8, v8, v5\nv_lshlrev_b32 v8, 4, v8\nv_add_u32 v{14+t}, v6, v8")
    ACC = 64
    for i in range(64): A(f"v_mov_b32 v{ACC+i}, 0")
    A("s_mov_b32 s31, 0\ns_mov_b32 s32, 0")
    Lc = A.label("cl")
    A(f"{Lc}:\ns_barrier")
    for i in range(6): A(f"v_add_u32 v{20+i}, s32, v{10+i}")
    def rd(st, buf):
        b = 32 + buf * 16
        A(f"ds_read_b128 {v(b,4)}, v{20+st}\nds_read_b128 {v(b+4,4)}, v{20+st} offset:4096")
        for t in range(2):
            for h in range(2):
                A(f"ds_read_b64_tr_b16 {v(b+8+4*t+2*h,2)}, v{24+t} offset:{st*4096+h*1024}")
    rd(0, 0)
    for st in range(4):
        if st < 3:
            rd(st + 1, (st + 1) & 1); A("s_waitcnt lgkmcnt(6)")
        else:
            A("s_waitcnt lgkmcnt(0)")
        b = 32 + (st & 1) * 16
        for tn in range(2):
            for tm in range(2):
                d = ACC + (tn * 2 + tm) * 16
                A(f"v_mfma_f32_32x32x16_bf16 {v(d,16)}, {v(b+8+4*tn,4)}, {v(b+4*tm,4)}, {v(d,16)}")
    A("s_add_u32 s32, s32, 32768\ns_cmp_eq_u32 s32, 98304\ns_cselect_b32 s32, 0, s32")
    A(f"s_add_u32 s31, s31, 1\ns_cmp_lt_u32 s31, {nst}\ns_cbranch_scc1 {Lc}")
    A("s_nop 15")
    A("s_lshl_b32 s33, s5, 7\ns_lshl_b32 s34, s28, 6\ns_add_u32 s33, s33, s34")
    A("s_lshl_b32 s34, s6, 7\ns_lshl_b32 s35, s29, 6\ns_add_u32 s34, s34, s35")
    A("v_add_u32 v5, s33, v3")
    if out['mode'] == 'row':
        A(f"s_mov_b32 s36, {out['ld']}\nv_mul_lo_u32 v5, v5, s36\nv_lshlrev_b32 v6, 3, v4\nv_add_u32 v5, v5, v6")
        A(f"s_lshl_b32 s34, s34, 1\ns_add_u32 s34, s34, {out['off']}\nv_add_u32 v5, s34, v5")
        A(f"v_add_u32 v6, {32*out['ld']}, v5")
        neg = "-" if out.get('neg') else ""
        for tn in range(2):
            for tm in range(2):
                d = ACC + (tn * 2 + tm) * 16
                for q in range(4):
                    r = 32 + 2 * q
                    A(f"v_cvt_pk_bf16_f32 v{r}, {neg}v{d+4*q}, {neg}v{d+4*q+1}\nv_cvt_pk_bf16_f32 v{r+1}, {neg}v{d+4*q+2}, {neg}v{d+4*q+3}")
                    A(f"buffer_store_dwordx2 {v(r,2)}, v{5+tm}, s[16:19], 0 offen offset:{tn*64+q*16}")
                A("s_waitcnt vmcnt(0)")
    else:
        A(f"s_mov_b32 s36, 1.0\ns_cmp_lt_u32 s6, 5\ns_cselect_b32 s36, {hex(f2u(QSCALE))}, s36")
        for i in range(64): A(f"v_mul_f32 v{ACC+i}, s36, v{ACC+i}")
        A("v_lshlrev_b32 v5, 4, v5\nv_lshlrev_b32 v6, 15, v4\nv_add_u32 v5, v5, v6")
        A(f"s_lshl_b32 s34, s34, 12\ns_add_u32 s34, s34, {out['off']}")
        for tn in range(2):
            for tm in range(2):
                d = ACC + (tn * 2 + tm) * 16
                for p in range(2):
                    r = 32 + 4 * p
                    for i in range(4):
                        A(f"v_cvt_pk_bf16_f32 v{r+i}, v{d+8*p+2*i}, v{d+8*p+2*i+1}")
                    A(f"s_nop 1\nv_permlane32_swap_b32 v{r}, v{r+2}\nv_permlane32_swap_b32 v{r+1}, v{r+3}")
                    A(f"s_add_u32 s35, s34, {(tn*4+p*2)*32768}")
                    A(f"buffer_store_dwordx4 {v(r,4)}, v5, s[16:19], s35 offen offset:{tm*512}")
                A("s_waitcnt vmcnt(0)")
    A("s_endpgm")
    A(f"{Lload}:")
    A("s_sub_u32 s4, s4, 4")
    A("v_lshrrev_b32 v3, 3, v2\ns_lshl_b32 s28, s4, 5\nv_add_u32 v3, s28, v3")
    A("v_and_b32 v4, 7, v2")
    A("v_lshrrev_b32 v8, 4, v2\ns_lshl_b32 s28, s4, 4\nv_add_u32 v9, s28, v8")
    A("v_and_b32 v7, 15, v2\nv_lshlrev_b32 v8, 2, v8\nv_xor_b32 v7, v7, v8\nv_lshlrev_b32 v7, 4, v7")
    A("s_lshl_b32 s29, s5, 7\ns_lshl_b32 s30, s6, 8")
    for si, sg in enumerate(segs):
        for i in range(4):
            A(f"v_add_u32 v5, {8*i}, v3\nv_lshrrev_b32 v6, 1, v5\nv_and_b32 v6, 7, v6\nv_xor_b32 v6, v6, v4\nv_lshlrev_b32 v6, 4, v6")
            A(f"v_add_u32 v5, s29, v5\ns_mov_b32 s31, {sg[2]}\nv_mul_lo_u32 v5, v5, s31\nv_add_u32 v5, v5, v6\nv_add_u32 v{10+8*si+i}, {sg[1]}, v5")
            A(f"v_add_u32 v5, {4*i}, v9\ns_mov_b32 s31, {sg[5]}\nv_mul_lo_u32 v5, v5, s31\nv_add_u32 v5, v5, v7\nv_add_u32 v5, s30, v5\nv_add_u32 v{14+8*si+i}, {sg[4]}, v5")
    A("s_lshl_b32 s33, s4, 12")
    stages = []
    for si, sg in enumerate(segs):
        for k in range(sg[6] // 64): stages.append((si, k))
    def issue(n):
        si, k = stages[n]; sg = segs[si]
        A(f"s_mov_b32 s34, {k*128}\ns_mov_b32 s35, {k*64*sg[5]}")
        for i in range(4):
            A(f"s_add_u32 m0, s33, {(n%3)*32768+i*1024}\ns_nop 0\nbuffer_load_dwordx4 v{10+8*si+i}, s[{8+12*si}:{11+12*si}], s34 offen lds")
            A(f"s_add_u32 m0, s33, {(n%3)*32768+16384+i*1024}\ns_nop 0\nbuffer_load_dwordx4 v{14+8*si+i}, s[{12+12*si}:{15+12*si}], s35 offen lds")
    issue(0); issue(1)
    for n in range(nst):
        A(f"s_waitcnt vmcnt({8 if n+1 < nst else 0})\ns_barrier")
        if n + 2 < nst: issue(n + 2)
    A(f"{Lend}:\ns_endpgm")
    return kernel_desc(name, 128)

def attention(A, name):
    kernel_begin(A, name)
    Lend = A.label("end")
    A(f"s_cmp_ge_u32 s2, 256\ns_cbranch_scc1 {Lend}")
    A(f"s_load_dwordx2 s[40:41], s[0:1], {KA['ws']}")
    A("v_lshrrev_b32 v1, 6, v0\nv_and_b32 v2, 63, v0\ns_nop 0\nv_readfirstlane_b32 s4, v1")
    A("s_and_b32 s5, s2, 7\ns_lshr_b32 s6, s2, 3")
    A("s_and_b32 s7, s6, 1\ns_mul_i32 s20, s6, 5\ns_lshr_b32 s20, s20, 1\ns_add_u32 s21, s20, s7\ns_add_u32 s22, s21, 1")
    A("s_add_u32 s23, s20, 2\ns_cmp_eq_u32 s7, 1\ns_cselect_b32 s23, s20, s23\ns_lshl_b32 s24, s7, 3")
    A("s_waitcnt lgkmcnt(0)")
    A.srd(8, 40, 41, NB['ws'])
    KB = [0, 8192, 16384]; VB = [24576, 32768 + 64, 40960 + 128]; ONES = 49152 + 192
    A("s_lshl_b32 s25, s5, 8\ns_lshl_b32 s26, s4, 6\ns_add_u32 s25, s25, s26\ns_sub_u32 s25, s25, 256")
    Lsk = A.label("skipdma")
    A(f"s_cmp_lt_i32 s25, 0\ns_cbranch_scc1 {Lsk}")
    A("v_add_u32 v3, s25, v2\nv_lshlrev_b32 v3, 4, v3\ns_lshl_b32 s26, s4, 10")
    for sec, base in ((80, KB), (160, VB)):
        for i in range(3):
            A(f"s_add_u32 s27, s{21+i}, {sec}\ns_lshl_b32 s27, s27, 15\ns_add_u32 s27, s27, {QKV_OFF}")
            A(f"s_add_u32 m0, s26, {base[i]}\ns_nop 0\nbuffer_load_dwordx4 v3, s[8:11], s27 offen lds")
    A(f"{Lsk}:")
    A("v_mov_b32 v4, 0x3f803f80\nv_mov_b32 v5, v4\nv_mov_b32 v6, v4\nv_mov_b32 v7, v4")
    A(f"v_lshlrev_b32 v3, 4, v0\nv_add_u32 v3, {ONES}, v3\nds_write_b128 v3, v[4:7]")
    A("v_and_b32 v8, 31, v2\nv_lshrrev_b32 v9, 5, v2")
    A("s_lshl_b32 s25, s5, 8\ns_lshl_b32 s26, s4, 5\ns_add_u32 s25, s25, s26")
    A("v_add_u32 v10, s25, v8\nv_lshlrev_b32 v3, 4, v10\nv_lshlrev_b32 v4, 15, v9\nv_add_u32 v4, v3, v4")
    A(f"s_lshl_b32 s27, s21, 15\ns_add_u32 s27, s27, {QKV_OFF}\nbuffer_load_dwordx4 v[12:15], v4, s[8:11], s27 offen")
    A(f"s_lshl_b32 s27, s23, 15\ns_add_u32 s27, s27, s24\ns_add_u32 s27, s27, {QKV_OFF}\nbuffer_load_dwordx2 v[16:17], v3, s[8:11], s27 offen")
    MD, MF = 32, 48
    A("v_lshlrev_b32 v3, 2, v9\nv_mov_b32 v5, 0xf149f2ca")
    for r in range(16):
        A(f"v_add_u32 v4, {8*(r>>2)+(r&3)}, v3\nv_cmp_gt_u32 vcc, v4, v8\ns_nop 1\nv_cndmask_b32 v{MD+r}, 0, v5, vcc\nv_cndmask_b32 v{MF+r}, v5, 0, vcc")
    A("s_lshl_b32 s26, s4, 9")
    A(f"v_lshlrev_b32 v3, 4, v8\nv_add_u32 v3, s26, v3\nv_lshlrev_b32 v4, 13, v9\nv_add_u32 v20, v3, v4")
    A(f"s_add_u32 s27, s24, {KB[2]}\nv_mov_b32 v4, s27\nv_mov_b32 v5, {ONES}\nv_cmp_eq_u32 vcc, 1, v9\ns_nop 1\nv_cndmask_b32 v4, v4, v5, vcc\nv_add_u32 v21, v3, v4")
    A("v_and_b32 v3, 15, v2\nv_lshrrev_b32 v3, 2, v3\nv_lshl_add_u32 v3, v9, 2, v3\nv_lshlrev_b32 v3, 4, v3\nv_add_u32 v3, s26, v3")
    A("v_lshrrev_b32 v4, 4, v2\nv_and_b32 v4, 1, v4\nv_and_b32 v5, 3, v2\nv_lshl_add_u32 v4, v4, 2, v5")
    A(f"v_mov_b32 v6, {ONES}\ns_add_u32 s27, s24, {VB[2]}")
    for dc, val in ((0, VB[0]), (1, VB[0] + 8), (2, VB[1]), (3, VB[1] + 8), (4, "s27")):
        A(f"v_mov_b32 v5, {val}\nv_cmp_eq_u32 vcc, {dc}, v4\ns_nop 1\nv_cndmask_b32 v6, v6, v5, vcc")
    A("v_add_u32 v22, v3, v6")
    A("s_waitcnt vmcnt(0) lgkmcnt(0)\ns_barrier")
    A("v_cmp_eq_u32 vcc, 1, v9\ns_nop 1\nv_cndmask_b32 v16, v16, 0, vcc\nv_cndmask_b32 v17, v17, 0, vcc")
    A("s_sub_u32 s28, 8, s4\ns_cmp_eq_u32 s5, 0\ns_cselect_b32 s28, s28, 0")
    S = 64; KF = 24; VF = 96; P = 112; O = 80; M = 18
    A(f"v_mov_b32 v{M}, 0xf149f2ca")
    def qk(t):
        A(f"ds_read_b128 {v(KF,4)}, v20 offset:{t*512}\nds_read_b64 {v(KF+4,2)}, v21 offset:{t*512}\ns_waitcnt lgkmcnt(0)")
        c = v(MF, 16) if t == 0 else v(MD, 16) if t == 8 else "0"
        A(f"v_mfma_f32_32x32x16_bf16 {v(S,16)}, {v(KF,4)}, v[12:15], {c}")
        A(f"v_mfma_f32_32x32x8bf16_1k {v(S,16)}, {v(KF+4,2)}, v[16:17], {v(S,16)}")
        A("s_nop 15")
    for t in range(9):
        Ls = A.label("p1")
        A(f"s_cmp_gt_u32 s28, {t}\ns_cbranch_scc1 {Ls}")
        qk(t)
        for r in range(0, 16, 2): A(f"v_max3_f32 v{M}, v{M}, v{S+r}, v{S+r+1}")
        A(f"{Ls}:")
    A(f"v_mov_b32 v19, v{M}\ns_nop 1\nv_permlane32_swap_b32 v{M}, v19\ns_nop 1\nv_max_f32 v{M}, v{M}, v19")
    A(f"v_sub_f32 v3, 0, v{M}\nv_and_b32 v4, 0xffff0000, v3\nv_sub_f32 v3, v3, v4\nv_and_b32 v5, 0xffff0000, v3\nv_sub_f32 v3, v3, v5")
    A("v_lshrrev_b32 v4, 16, v4\nv_or_b32 v4, v4, v5\nv_lshrrev_b32 v3, 16, v3")
    A("v_cmp_eq_u32 vcc, 1, v9\ns_nop 1\nv_cndmask_b32 v16, v16, v4, vcc\nv_cndmask_b32 v17, v17, v3, vcc")
    for r in range(16): A(f"v_mov_b32 v{O+r}, 0")
    for t in range(9):
        Ls = A.label("p2")
        A(f"s_cmp_gt_u32 s28, {t}\ns_cbranch_scc1 {Ls}")
        for a in range(2):
            for h in range(2):
                A(f"ds_read_b64_tr_b16 {v(VF+4*a+2*h,2)}, v22 offset:{t*512+a*256+h*128}")
        qk(t)
        for r in range(16): A(f"v_exp_f32 v{S+r}, v{S+r}")
        A("s_nop 0")
        for r in range(8): A(f"v_cvt_pk_bf16_f32 v{P+r}, v{S+2*r}, v{S+2*r+1}")
        A("s_nop 1")
        for a in range(2):
            A(f"v_mfma_f32_32x32x16_bf16 {v(O,16)}, {v(VF+4*a,4)}, {v(P+4*a,4)}, {v(O,16)}")
        A(f"{Ls}:")
    A("s_nop 15")
    A(f"v_mov_b32 v3, v{O+8}\nv_mov_b32 v4, v{O+8}\ns_nop 1\nv_permlane32_swap_b32 v3, v4\ns_nop 1")
    A("v_rcp_f32 v4, v4\ns_nop 1")
    for r in range(12): A(f"v_mul_f32 v{O+r}, v4, v{O+r}")
    for r in range(6): A(f"v_cvt_pk_bf16_f32 v{P+r}, v{O+2*r}, v{O+2*r+1}")
    A("v_mul_u32_u24 v3, 1280, v10\nv_lshl_add_u32 v5, v9, 3, v3")
    A(f"s_mul_i32 s27, s6, 40\ns_add_u32 s27, s27, {O_OFF}\ns_add_u32 s29, s27, s24")
    A(f"buffer_store_dwordx2 {v(P,2)}, v5, s[8:11], s29 offen\nbuffer_store_dwordx2 {v(P+2,2)}, v5, s[8:11], s29 offen offset:16")
    A("s_add_u32 s29, s27, 32\ns_cmp_eq_u32 s7, 1\ns_cselect_b32 s29, s27, s29")
    A(f"s_mov_b32 exec_hi, 0\nbuffer_store_dwordx2 {v(P+4,2)}, v3, s[8:11], s29 offen")
    A(f"s_waitcnt vmcnt(0)\n{Lend}:\ns_endpgm")
    return kernel_desc(name, 128)

def build(pre=None):
    A = Asm()
    head = []
    descs = []
    A('.amdgcn_target "amdgcn-amd-amdhsa--gfx950"\n.text')
    if pre:
        h, d = pre(A); head += h; descs += d
    descs.append(gemm(A, "qkv_kernel", 16, 15, [("Bx", 0, 1280, "Wqkv", 0, 3840, 640)], dict(mode="planes", buf="ws", off=QKV_OFF)))
    descs.append(gemm(A, "fa_kernel", 16, 5, [("Ax", 0, 1280, "Dre", 0, 1280, 640)], dict(mode="row", buf="ws", off=AB_OFF, ld=1280)))
    descs.append(gemm(A, "fb_kernel", 16, 5, [("Ax", 0, 1280, "Dim", 0, 1280, 640)], dict(mode="row", buf="ws", off=AB_OFF + 2621440, ld=1280, neg=1)))
    descs.append(attention(A, "att_kernel"))
    descs.append(gemm(A, "fy_kernel", 16, 5, [("Sre", 0, 4096, "ws", AB_OFF, 1280, 2048), ("Sim", 0, 4096, "ws", AB_OFF + 2621440, 1280, 2048)], dict(mode="row", buf="out", off=0, ld=2560)))
    descs.append(gemm(A, "op_kernel", 16, 5, [("ws", O_OFF, 1280, "Wo", 0, 1280, 640)], dict(mode="row", buf="out", off=1280, ld=2560)))
    head += ["; @launch kernel=qkv_kernel grid=(240,1,1) block=(512,1,1) lds=98304",
             "; @launch kernel=fa_kernel grid=(80,1,1) block=(512,1,1) lds=98304",
             "; @launch kernel=fb_kernel grid=(80,1,1) block=(512,1,1) lds=98304",
             "; @launch kernel=att_kernel grid=(256,1,1) block=(512,1,1) lds=65536",
             "; @launch kernel=fy_kernel grid=(80,1,1) block=(512,1,1) lds=98304",
             "; @launch kernel=op_kernel grid=(80,1,1) block=(512,1,1) lds=98304"]
    txt = "\n".join(head) + "\n" + A.text() + '.section .rodata,"a"\n' + "".join(".p2align 6\n" + d for d in descs)
    return txt

if __name__ == "__main__":
    open(sys.argv[1], "w").write(build())
```

```python
import sys, math, struct
from lib import *

NAME = "concat_heads__spectral_fnet__sliding_block__prompt_kernel"
def f2u(x): return struct.unpack("<I", struct.pack("<f", x))[0]
def fl(x): return hex(f2u(x))
QSCALE = 20 ** -0.5 * math.log2(math.e)
BIG = 0xf149f2ca
BIGH = 0xf149

WS_QKV = 0
WS_OF = 8 << 20
WS_OT = 10 << 20
WS_Z = 11 << 20
WS_FL = 14 << 20
WS_TS = 16 << 20
PH_QA, PH_QB, PH_OA, PH_OB, PH_Z = range(5)

K = 1024
L_WB = 0
L_SLOT = [104 * K, 128 * K, 56 * K, 80 * K]
L_WO = 80 * K
L_KV = [0, 44 * K - 512]
KPL = [0, 6144, 12288]
VPL = [18432, 24576 + 64, 30720 + 128]
L_Z = 0
L_STG = 132 * K
L_ONES = 152 * K
L_MASK = L_ONES + 6144
L_CNT = L_MASK + 1664
C_NONCE, C_B1, C_QA, C_KVA, C_QB, C_KVB, C_ATA, C_A2, C_A2B, C_ZF = [L_CNT + o for o in (0, 8, 12, 16, 20, 24, 28, 32, 36, 40)]
L_A1X = [0, 32 * K, 64 * K]
L_A1S = 96 * K
LDS_BYTES = 160 * K

sW, sX, sLOC, sJ, sC = 3, 4, 5, 6, 7
RX, RW, RS, RO, ROUT, RD = 8, 12, 16, 20, 24, 28
sN = 32
sGW = 34
sHALF = 35
sRID = 36
sK0 = 37
T0 = 40
sSPIN = 60
CONST = 136
vTS = 1
SPIN_MAX = 400000


class G:
    def __init__(self, diag=False, opt=None):
        self.A = Asm()
        self.diag = diag
        self.opt = opt or {}

    def ts(self, i):
        if self.diag:
            self.A(f"s_memrealtime s[98:99]\ns_waitcnt lgkmcnt(0)\nv_writelane_b32 v{vTS}, s98, {i}")

    def lds_arrive(self, cnt, tmp=9):
        A = self.A
        A(f"v_mov_b32 v{tmp}, {cnt}\nv_mov_b32 v{tmp+1}, 1\ns_mov_b64 exec, 1\nds_add_u32 v{tmp}, v{tmp+1}\ns_mov_b64 exec, -1")

    def lds_wait(self, cnt, n, tmp=9):
        A = self.A
        L = A.label("lw"); E = A.label("lwd")
        A(f"v_mov_b32 v{tmp}, {cnt}\ns_mov_b32 s{sSPIN}, 0")
        A(f"{L}:\nds_read_b32 v{tmp+1}, v{tmp}\ns_add_u32 s{sSPIN}, s{sSPIN}, 1\ns_waitcnt lgkmcnt(0)\nv_readfirstlane_b32 s{T0}, v{tmp+1}")
        A(f"s_cmp_gt_u32 s{sSPIN}, {SPIN_MAX*4}\ns_cbranch_scc1 {E}\ns_cmp_lt_u32 s{T0}, {n}\ns_cbranch_scc1 {L}\n{E}:")

    def poll(self, vaddr, tmp=10):
        A = self.A
        L = A.label("pl"); E = A.label("pld")
        A(f"s_mov_b32 s{sSPIN}, 0")
        A(f"{L}:\nbuffer_load_dwordx2 {v(tmp,2)}, v{vaddr}, {s(RS,4)}, 0 offen sc1\ns_add_u32 s{sSPIN}, s{sSPIN}, 1\ns_waitcnt vmcnt(0)")
        A(f"v_cmp_ne_u64 vcc, {s(sN,2)}, {v(tmp,2)}\ns_cmp_gt_u32 s{sSPIN}, {SPIN_MAX}\ns_cbranch_scc1 {E}\ns_cmp_eq_u64 vcc, 0\ns_cbranch_scc0 {L}\n{E}:")

    def flag(self, sphase_off, tmp=9):
        A = self.A
        A(f"s_lshl_b32 s{T0}, s{sRID}, 7\ns_lshl_b32 s{T0+1}, s{sGW}, 3\ns_add_u32 s{T0}, s{T0}, s{T0+1}\ns_add_u32 s{T0}, s{T0}, {sphase_off}")
        A(f"v_mov_b32 v{tmp}, s{T0}\nv_mov_b32 v{tmp+1}, s{sN}\nv_mov_b32 v{tmp+2}, s{sN+1}\ns_mov_b64 exec, 1")
        A(f"buffer_store_dwordx2 {v(tmp+1,2)}, v{tmp}, {s(RS,4)}, 0 offen sc1\ns_mov_b64 exec, -1")

    def get_nonce(self, tmp=10):
        A = self.A
        A(f"v_mov_b32 v{tmp-1}, {C_NONCE}\nds_read_b64 {v(tmp,2)}, v{tmp-1}\ns_waitcnt lgkmcnt(0)")
        A(f"v_readfirstlane_b32 s{sN}, v{tmp}\nv_readfirstlane_b32 s{sN+1}, v{tmp+1}")

    def nonce_issue(self):
        A = self.A
        L = A.label("ni")
        A(f"s_cmp_lg_u32 s{sW}, 0\ns_cbranch_scc1 {L}\nv_mov_b32 v16, 0\nbuffer_load_dwordx2 v[18:19], v16, {s(RD,4)}, 0 offen sc1\n{L}:")

    def nonce_finish(self):
        A = self.A
        L = A.label("nf"); R = A.label("nr"); E = A.label("ne")
        A(f"s_cmp_lg_u32 s{sW}, 0\ns_cbranch_scc1 {L}\ns_mov_b32 s{sSPIN}, 0")
        A(f"{R}:\ns_waitcnt vmcnt(0)\nv_cmp_eq_u64 vcc, 0, v[18:19]\ns_add_u32 s{sSPIN}, s{sSPIN}, 1\ns_cmp_eq_u64 vcc, 0\ns_cbranch_scc1 {E}")
        A(f"s_cmp_gt_u32 s{sSPIN}, {SPIN_MAX}\ns_cbranch_scc1 {E}\nv_mov_b32 v16, 0\nbuffer_load_dwordx2 v[18:19], v16, {s(RD,4)}, 0 offen sc1\ns_branch {R}")
        A(f"{E}:\nv_mov_b32 v16, {C_NONCE}\nds_write_b64 v16, v[18:19]\ns_waitcnt lgkmcnt(0)\n{L}:")

    def prologue(self):
        A = self.A
        kernel_begin(A, NAME)
        A("s_cmp_ge_u32 s2, 256\ns_cbranch_scc1 L_end")
        A("s_load_dwordx2 s[64:65], s[0:1], 0\ns_load_dwordx4 s[68:71], s[0:1], 40\ns_load_dwordx8 s[72:79], s[0:1], 56")
        if self.diag:
            A(f"s_memrealtime s[98:99]\nv_mov_b32 v{vTS}, 0")
        A(f"v_lshrrev_b32 v3, 6, v0\nv_and_b32 v2, 63, v0\ns_and_b32 s{sX}, s2, 7\nv_readfirstlane_b32 s{sW}, v3")
        A(f"s_lshr_b32 s{sLOC}, s2, 3\ns_lshr_b32 s{sC}, s2, 4\ns_and_b32 s{sJ}, s{sLOC}, 1\ns_lshl_b32 s{T0}, s{sX}, 1\ns_add_u32 s{sJ}, s{sJ}, s{T0}")
        A(f"s_lshl_b32 s{sRID}, s{sJ}, 4\ns_add_u32 s{sRID}, s{sRID}, s{sC}\ns_and_b32 s{sGW}, s{sW}, 3")
        for r, nb in ((RX, NB['Bx']), (RW, NB['Wqkv']), (RS, NB['ws']), (RO, NB['Wo']), (ROUT, NB['out']), (RD, NB['dbg'])):
            A(f"s_mov_b32 s{r+2}, {nb}\ns_mov_b32 s{r+3}, 0x20000")
        A("v_lshrrev_b32 v3, 3, v2\nv_and_b32 v4, 7, v2")
        A("s_waitcnt lgkmcnt(0)")
        if self.diag:
            A(f"v_writelane_b32 v{vTS}, s98, 0")
        A(f"s_cmp_eq_u32 s{sC}, 15\ns_cselect_b32 s{RX}, s64, s68\ns_cselect_b32 s{RX+1}, s65, s69")
        for r, p in ((RW, 70), (RO, 72), (ROUT, 74), (RD, 76), (RS, 78)):
            A(f"s_mov_b32 s{r}, s{p}\ns_mov_b32 s{r+1}, s{p+1}")
        A(f"s_cmp_lt_u32 s{sW}, 4\ns_cbranch_scc1 L_C")
        A(f"s_mov_b32 s{sHALF}, 0\ns_cmp_eq_u32 s{sC}, 15\ns_cbranch_scc1 L_A1L")

    def constgen_setup(self):
        A = self.A
        A(f"s_lshr_b32 s{T0}, s{sLOC}, 3\ns_mul_i32 s{T0}, s{T0}, 80\ns_and_b32 s{T0+1}, s{sGW}, 1\ns_add_u32 s{T0}, s{T0}, s{T0+1}")
        A(f"s_lshr_b32 s{T0+1}, s{sGW}, 1\ns_mul_i32 s{T0+1}, s{T0+1}, 160")
        A(f"v_and_b32 v30, 15, v2\nv_lshl_add_u32 v30, v30, 1, s{T0}\nv_lshrrev_b32 v31, 4, v2\nv_lshl_add_u32 v31, v31, 2, s{T0+1}\nv_cvt_f32_u32 v31, v31")
        for et in range(3):
            A(f"v_add_u32 v{24+et}, {32*et}, v30\nv_cvt_f32_u32 v{24+et}, v{24+et}\nv_mul_f32 v{24+et}, {fl(1/640)}, v{24+et}\nv_mul_f32 v{27+et}, v{24+et}, v31")
        self.cg = [(st, et) for st in range(5) for et in range(3)]

    def cfrag(self, st, et, kind):
        return CONST + ((st * 3 + et) * 2 + kind) * 4

    def constgen(self, n):
        A = self.A
        for _ in range(n):
            if not self.cg: return
            st, et = self.cg.pop(0)
            for j in range(8):
                A(f"v_fmamk_f32 v{32+j}, v{24+et}, {fl(32*st + 16*(j>>2) + (j&3))}, v{27+et}")
            for j in range(8):
                A(f"v_cos_f32 v{40+j}, v{32+j}\nv_sin_f32 v{48+j}, v{32+j}")
            A("s_nop 0")
            for j in range(4):
                A(f"v_cvt_pk_bf16_f32 v{self.cfrag(st,et,0)+j}, v{40+2*j}, v{41+2*j}\nv_cvt_pk_bf16_f32 v{self.cfrag(st,et,1)+j}, v{48+2*j}, v{49+2*j}")

    def wo_addr(self):
        A = self.A
        A(f"s_mul_i32 s{T0}, s{sC}, 80")
        for i in range(5):
            A(f"v_add_u32 v5, {64*i}, v2\nv_mul_u32_u24 v6, 13108, v5\nv_lshrrev_b32 v6, 16, v6\nv_mul_u32_u24 v7, 5, v6\nv_sub_u32 v7, v5, v7")
            A(f"v_mul_u32_u24 v6, 1280, v6\nv_lshl_add_u32 v6, v7, 4, v6\nv_add_u32 v{18+i}, s{T0}, v6")

    def wo_issue(self, grp_add):
        A = self.A
        A(f"s_add_u32 s{T0}, s{sGW}, {grp_add}\ns_mul_i32 s{T0+1}, s{T0}, {64*1280}\ns_mul_i32 s{T0}, s{T0}, 5120")
        for i in range(5):
            A(f"s_add_u32 m0, s{T0}, {L_WO + 1024*i}\ns_nop 0\nbuffer_load_dwordx4 v{18+i}, {s(RO,4)}, s{T0+1} offen lds")

    def wo_tail(self):
        A = self.A
        L = A.label("wot")
        A(f"s_cmp_ge_u32 s{sGW}, 2\ns_cbranch_scc1 {L}")
        self.wo_issue(8)
        A(f"{L}:")

    def b1_loader(self):
        A = self.A
        A(f"s_lshl_b32 s{T0}, s{sJ}, 7\ns_lshl_b32 s{T0+1}, s{sGW}, 5\ns_add_u32 s{T0}, s{T0}, s{T0+1}")
        A(f"v_add_u32 v5, s{T0}, v3\nv_mul_u32_u24 v5, 1280, v5\nv_lshrrev_b32 v6, 1, v3\nv_xor_b32 v7, v6, v4\nv_lshl_add_u32 v10, v7, 4, v5")
        A(f"v_xor_b32 v7, 4, v7\nv_lshl_add_u32 v11, v7, 4, v5\nv_add_u32 v11, {8*1280}, v11\nv_add_u32 v12, {16*1280}, v10\nv_add_u32 v13, {16*1280}, v11")
        A(f"s_mul_i32 s{T0}, s{sC}, 52\ns_lshr_b32 s{T0}, s{T0}, 8\ns_mul_i32 s{T0}, s{T0}, 640\ns_lshl_b32 s{T0+1}, s{sC}, 7\ns_add_u32 s{T0}, s{T0}, s{T0+1}")
        A(f"s_mul_i32 s{T0+1}, s{sGW}, {16*3840}\ns_add_u32 s{T0}, s{T0}, s{T0+1}")
        A(f"v_and_b32 v6, 1, v6\nv_lshlrev_b32 v6, 2, v6\nv_xor_b32 v6, v6, v4\nv_mul_u32_u24 v5, 3840, v3\nv_lshl_add_u32 v5, v6, 4, v5")
        A(f"v_add_u32 v14, s{T0}, v5\nv_add_u32 v15, {8*3840}, v14")
        A(f"s_add_u32 s{sK0}, s{sC}, s{sX}\ns_mul_i32 s{T0}, s{sK0}, 26\ns_lshr_b32 s{T0}, s{T0}, 8\ns_mul_i32 s{T0}, s{T0}, 10\ns_sub_u32 s{sK0}, s{sK0}, s{T0}")
        A(f"s_lshl_b32 s38, s{sGW}, 12\ns_lshl_b32 s39, s{sGW}, 11")
        def nextk():
            A(f"s_lshl_b32 s{T0}, s{sK0}, 7\ns_mul_i32 s{T0+1}, s{sK0}, {64*3840}\ns_add_u32 s{sK0}, s{sK0}, 1\ns_cmp_eq_u32 s{sK0}, 10\ns_cselect_b32 s{sK0}, 0, s{sK0}")
        def stage(n):
            nextk()
            b = L_SLOT[n % 4]
            for i in range(2):
                A(f"s_add_u32 m0, s39, {b + 16*K + 1024*i}\ns_nop 0\nbuffer_load_dwordx4 v{14+i}, {s(RW,4)}, s{T0+1} offen lds")
            for i in range(4):
                A(f"s_add_u32 m0, s38, {b + 1024*i}\ns_nop 0\nbuffer_load_dwordx4 v{10+i}, {s(RX,4)}, s{T0} offen lds")
            return 6
        def chunk(n):
            nextk()
            A(f"s_add_u32 s{T0+1}, s{T0+1}, 640")
            for i in range(2):
                A(f"s_add_u32 m0, s39, {L_WB + 8*K*n + 1024*i}\ns_nop 0\nbuffer_load_dwordx4 v{14+i}, {s(RW,4)}, s{T0+1} offen lds")
            return 2
        q = []
        for n in range(3): q.append(stage(n))
        self.ts(1)
        self.constgen_setup()
        self.constgen(self.opt.get('cg0', 9))
        self.wo_addr()
        for n in range(10):
            q.pop(0)
            A(f"s_waitcnt vmcnt({sum(q)})\ns_barrier")
            if n == 0: self.ts(2)
            if n < 7: q.append(stage(n + 3))
            elif n == 7: q.append(sum(chunk(i) for i in (0, 1, 2)))
            elif n == 8: q.append(sum(chunk(i) for i in (3, 4, 5)))
            else: q.append(sum(chunk(i) for i in (6, 7, 8, 9)))
            self.constgen(1)
        self.ts(3)
        for n in range(3):
            q.pop(0)
            A(f"s_waitcnt vmcnt({sum(q)})\ns_barrier")
            if n == 0:
                self.wo_issue(0); self.wo_issue(4); q.append(10)
        self.wo_tail()
        assert not self.cg
        self.ts(4)
        A("s_branch L_ATT")

    def a1_loader(self):
        A = self.A
        A("L_A1L:")
        A(f"s_lshl_b32 s{T0}, s{sGW}, 9\ns_add_u32 s{T0}, s{T0}, s{sJ}\nv_lshl_add_u32 v5, v3, 4, s{T0}\nv_mul_u32_u24 v5, 1280, v5")
        A("v_lshrrev_b32 v6, 1, v3\nv_and_b32 v6, 1, v6\nv_lshlrev_b32 v6, 2, v6\nv_xor_b32 v6, v6, v4\nv_lshl_add_u32 v10, v6, 4, v5")
        for i in range(1, 4): A(f"v_add_u32 v{10+i}, {128*1280*i}, v10")
        A(f"s_lshl_b32 s38, s{sGW}, 12")
        def stage(n):
            b = L_A1X[n % 3]
            for h in range(2):
                A(f"s_mov_b32 s{T0}, {128*n + 640*h}")
                for i in range(4):
                    A(f"s_add_u32 m0, s38, {b + 16*K*h + 1024*i}\ns_nop 0\nbuffer_load_dwordx4 v{10+i}, {s(RX,4)}, s{T0} offen lds")
            return 8
        q = [stage(n) for n in range(3)]
        self.ts(1)
        self.constgen_setup()
        self.constgen(9)
        self.wo_addr()
        for n in range(5):
            q.pop(0)
            A(f"s_waitcnt vmcnt({sum(q)})\ns_barrier")
            if n == 0: self.ts(2)
            if n in (1, 2): q.append(stage(n + 2))
            self.constgen(2)
        self.ts(3)
        A("s_barrier")
        self.wo_issue(0); self.wo_issue(4); self.wo_tail()
        assert not self.cg
        self.ts(4)
        A("s_branch L_ATT")

    def c_init(self):
        A = self.A
        A(f"L_C:\ns_mov_b32 s{sHALF}, 1")
        A(f"s_getpc_b64 s[56:57]\nL_pc:\ns_sub_u32 s56, s56, L_pc-{NAME}\ns_subb_u32 s57, s57, 0\ns_mov_b32 s58, L_codeend-{NAME}\ns_mov_b32 s59, 0x20000")
        L = A.label("pf")
        A(f"s_cmp_lg_u32 s{sW}, 1\ns_cbranch_scc1 {L}\nv_lshl_add_u32 v5, v2, 5, s{sLOC}\nv_lshlrev_b32 v5, 7, v5\nbuffer_load_dword v15, v5, s[56:59], 0 offen\n{L}:")
        L = A.label("nw")
        A(f"s_cmp_lg_u32 s{sW}, 2\ns_cbranch_scc1 {L}\ns_cmp_lg_u32 s2, 0\ns_cbranch_scc1 {L}")
        A(f"s_memrealtime s[54:55]\ns_waitcnt lgkmcnt(0)\nv_mov_b32 v6, s54\nv_mov_b32 v7, s55\nv_or_b32 v7, 0x40000000, v7\nv_mov_b32 v5, 0\ns_mov_b64 exec, 1")
        A(f"buffer_store_dwordx2 v[6:7], v5, {s(RD,4)}, 0 offen sc1\ns_mov_b64 exec, -1\n{L}:")
        A(f"v_mov_b32 v8, 0x3f803f80\nv_mov_b32 v10, v8\nv_mov_b32 v11, v8\ns_lshl_b32 s{T0}, s{sJ}, 2\ns_sub_u32 s{T0}, 8, s{T0}")
        for base in (0, 128):
            A(f"v_add_u32 v5, {base}, v0\nv_lshrrev_b32 v6, 5, v5\nv_and_b32 v7, 31, v5")
            A(f"v_mov_b32 v12, 0x00003f80\nv_mov_b32 v13, {hex((BIGH<<16)|0x3f80)}\nv_cmp_gt_i32 vcc, s{T0}, v6\ns_nop 1\nv_cndmask_b32 v12, v12, v13, vcc")
            A(f"v_cmp_eq_u32 vcc, 4, v7\nv_lshlrev_b32 v5, 4, v5\nv_add_u32 v5, {L_ONES}, v5\nv_cndmask_b32 v9, v8, v12, vcc\nds_write_b128 v5, v[8:11]\ns_nop 1")
        A(f"s_mul_i32 s{T0}, s{sGW}, 416\ns_add_u32 s{T0}, s{T0}, {L_MASK}\nv_mov_b32 v13, {hex(BIG)}")
        for base in (0, 40):
            A(f"v_add_u32 v5, {base}, v2\nv_add_u32 v6, s{sGW}, v5\nv_lshrrev_b32 v6, 5, v6\nv_cmp_eq_u32 vcc, 1, v6\nv_lshl_add_u32 v5, v5, 2, s{T0}\ns_nop 0\nv_cndmask_b32 v7, 0, v13, vcc\nds_write_b32 v5, v7")
        A(f"v_and_b32 v5, 15, v2\nv_lshlrev_b32 v5, 2, v5\nv_add_u32 v5, {L_CNT}, v5\nv_mov_b32 v6, 0\nds_write_b32 v5, v6")
        A("v_and_b32 v5, 15, v2\nv_lshrrev_b32 v5, 2, v5\nv_lshrrev_b32 v4, 5, v2\nv_lshl_add_u32 v6, v4, 3, v5\nv_lshlrev_b32 v6, 7, v6")
        A("v_and_b32 v7, 1, v2\nv_lshl_add_u32 v6, v7, 3, v6\nv_bfe_u32 v7, v2, 4, 1\nv_bfe_u32 v10, v2, 1, 1\nv_lshl_add_u32 v7, v7, 1, v10")
        A("v_lshrrev_b32 v5, 1, v5\nv_lshlrev_b32 v5, 2, v5\nv_xor_b32 v7, v7, v5\nv_lshl_add_u32 v8, v7, 4, v6\nv_xor_b32 v9, 64, v8")
        A("v_and_b32 v3, 31, v2")
        A(f"s_cmp_eq_u32 s{sC}, 15\ns_cbranch_scc1 L_A1C")

    def b1_consumer(self):
        A = self.A
        XR, ACC, WF, PK = 96, 64, 32, 16
        A(f"s_lshl_b32 s{T0}, s{sGW}, 12\nv_lshl_add_u32 v5, v3, 7, s{T0}\nv_bfe_u32 v6, v3, 1, 3")
        for st in range(4):
            A(f"v_add_u32 v7, {2*st}, v4\nv_xor_b32 v7, v7, v6\nv_lshl_add_u32 v{10+st}, v7, 4, v5")
        A(f"s_lshl_b32 s{T0}, s{sJ}, 7\ns_lshl_b32 s{T0+1}, s{sGW}, 5\ns_add_u32 s{T0}, s{T0}, s{T0+1}\nv_add_u32 v5, s{T0}, v3\nv_lshlrev_b32 v5, 4, v5\nv_lshl_add_u32 v14, v4, 15, v5")
        A(f"s_mul_i32 s{T0}, s{sC}, 52\ns_lshr_b32 s{T0}, s{T0}, 8\ns_mul_i32 s{T0}, s{T0}, 5\ns_add_u32 s{T0}, s{T0}, s{sC}\ns_lshl_b32 s38, s{T0}, 18")
        A(f"s_cmp_lt_u32 s{sC}, 5\ns_cselect_b32 s39, {fl(QSCALE)}, 1.0")
        A("s_waitcnt lgkmcnt(0)")
        self.ts(1)
        def mf(t, wreg, xreg, first):
            d = v(ACC + 16 * t, 16)
            A(f"v_mfma_f32_32x32x16_bf16 {d}, {v(wreg,4)}, {v(xreg,4)}, {'0' if first else d}")
        for n in range(10):
            b = L_SLOT[n % 4]
            for i in range(4): A(f"v_add_u32 v{22+i}, {b}, v{10+i}")
            A(f"v_add_u32 v26, {b+16*K}, v8\nv_add_u32 v27, {b+16*K}, v9")
            if n == 3: self.nonce_issue()
            if n == 6: self.nonce_finish()
            A("s_barrier")
            if n == 0: self.ts(2)
            def rd(st):
                A(f"ds_read_b128 {v(XR+16*n+4*st,4)}, v{22+st}")
                for t in range(2):
                    for h in range(2):
                        A(f"ds_read_b64_tr_b16 {v(WF+8*st+4*t+2*h,2)}, v{26+t} offset:{st*2048+h*512}")
            rd(0); rd(1); rd(2)
            for st in range(4):
                A(f"s_waitcnt lgkmcnt({[10,10,5,0][st]})")
                for t in range(2): mf(t, WF + 8 * st + 4 * t, XR + 16 * n + 4 * st, n == 0 and st == 0)
                if st == 0: rd(3)
        self.ts(3)
        self.get_nonce(tmp=22)
        A(f"v_add_u32 v26, {40*K}, v8\nv_add_u32 v27, {40*K}, v9")
        def rdb(g):
            n, st = divmod(g, 4)
            if st == 0 and n in (0, 3, 6): A("s_barrier")
            base = (8, 9) if n < 5 else (26, 27)
            for t in range(2):
                for h in range(2):
                    A(f"ds_read_b64_tr_b16 {v(WF+8*st+4*t+2*h,2)}, v{base[t]} offset:{(n%5)*8*K + st*2048 + h*512}")
        def epi(half):
            for i in range(32): A(f"v_mul_f32 v{ACC+i}, s39, v{ACC+i}")
            for t in range(2):
                for p in range(2):
                    r = PK + 4 * ((2 * t + p) & 1) + 12
                    r = (16, 28)[(2 * t + p) & 1]
                    for i in range(4):
                        A(f"v_cvt_pk_bf16_f32 v{r+i}, v{ACC+16*t+8*p+2*i}, v{ACC+16*t+8*p+2*i+1}")
                    A(f"s_add_u32 s{T0}, s38, {WS_QKV + (40*half + 4*t + 2*p)*32768}\ns_nop 0")
                    A(f"v_permlane32_swap_b32 v{r}, v{r+2}\nv_permlane32_swap_b32 v{r+1}, v{r+3}")
                    A(f"buffer_store_dwordx4 {v(r,4)}, v14, {s(RS,4)}, s{T0} offen sc1")
        rdb(0); rdb(1); rdb(2)
        epi(0)
        self.ts(4)
        for g in range(40):
            n, st = divmod(g, 4)
            A(f"s_waitcnt lgkmcnt({8 if g < 38 else 4*(39-g)})")
            for t in range(2): mf(t, WF + 8 * st + 4 * t, XR + 16 * n + 4 * st, g == 0)
            if g + 3 < 40: rdb(g + 3)
            if g == self.opt.get('flag_a', 26):
                A("s_waitcnt vmcnt(0)")
                self.flag(WS_FL + PH_QA * 32768, tmp=21)
                self.ts(5)
        self.lds_arrive(C_B1, tmp=22)
        A("s_nop 7")
        self.ts(6)
        epi(1)
        A("s_waitcnt vmcnt(0)")
        self.flag(WS_FL + PH_QB * 32768, tmp=21)
        self.ts(7)
        A("s_branch L_ATT")

    def a1_consumer(self):
        A = self.A
        A("L_A1C:")
        CF, ACC, XF = 128, 64, 32
        A(f"s_and_b32 s{T0}, s{sGW}, 1\ns_lshl_b32 s{T0}, s{T0}, 5\nv_add_u32 v5, s{T0}, v3\nv_cvt_f32_u32 v5, v5\nv_lshl_add_u32 v6, v4, 7, s{sJ}\nv_cvt_f32_u32 v6, v6")
        A(f"v_mul_f32 v6, v5, v6\nv_mul_f32 v6, {fl(1/2048)}, v6\nv_mul_f32 v5, {fl(1/128)}, v5")
        for st in range(8):
            for j in range(8): A(f"v_fmamk_f32 v{32+j}, v5, {fl(16*st+j)}, v6")
            for j in range(8): A(f"v_cos_f32 v{40+j}, v{32+j}\nv_sin_f32_e64 v{48+j}, -v{32+j}")
            A("s_nop 0")
            for j in range(4):
                A(f"v_cvt_pk_bf16_f32 v{CF+4*st+j}, v{40+2*j}, v{41+2*j}\nv_cvt_pk_bf16_f32 v{CF+32+4*st+j}, v{48+2*j}, v{49+2*j}")
        L = A.label("t0")
        A(f"s_cmp_lg_u32 s{T0}, 0\ns_cbranch_scc1 {L}\ns_mov_b32 exec_lo, 1\ns_mov_b32 exec_hi, 1")
        for i in range(32): A(f"v_mov_b32 v{CF+32+i}, 0xbf803f80")
        A(f"s_mov_b64 exec, -1\n{L}:")
        A(f"s_lshr_b32 s{T0+1}, s{sGW}, 1\ns_lshl_b32 s{T0+2}, s{T0+1}, 6\nv_xor_b32 v10, s{T0+2}, v8")
        A(f"s_bfe_u32 s{T0+2}, s{sJ}, 0x10001\ns_lshl_b32 s{T0+2}, s{T0+2}, 1\ns_lshl_b32 s{T0+3}, s{sGW}, 13\ns_add_u32 s{T0+3}, s{T0+3}, {L_A1S}")
        A(f"v_and_b32 v5, 7, v3\nv_xor_b32 v5, s{T0+2}, v5\nv_lshl_add_u32 v6, v3, 7, s{T0+3}\nv_lshl_add_u32 v6, v4, 3, v6")
        for sl in range(8): A(f"v_xor_b32 v7, {sl}, v5\nv_lshl_add_u32 v{200+sl}, v7, 4, v6")
        A(f"v_lshrrev_b32 v5, 3, v2\nv_and_b32 v6, 7, v2\nv_xor_b32 v7, v5, v6\nv_lshlrev_b32 v7, 4, v7\nv_lshl_add_u32 v7, v5, 7, v7\nv_add_u32 v11, s{T0+3}, v7")
        A(f"v_add_u32 v5, s{T0}, v5\nv_mul_u32_u24 v5, 40960, v5\nv_lshl_add_u32 v5, v6, 4, v5")
        A(f"s_lshl_b32 s{T0+1}, s{T0+1}, 11\ns_lshl_b32 s{T0+2}, s{sJ}, 7\ns_add_u32 s{T0+1}, s{T0+1}, s{T0+2}\nv_add_u32 v12, s{T0+1}, v5")
        A("s_waitcnt lgkmcnt(0)")
        self.ts(1)
        for n in range(5):
            A(f"v_add_u32 v13, {L_A1X[n%3]}, v10")
            if n == 1: self.nonce_issue_a1()
            A("s_barrier")
            if n == 0: self.ts(2)
            def rd(st):
                for h in range(2):
                    for hf in range(2):
                        A(f"ds_read_b64_tr_b16 {v(XF+8*(st&3)+4*h+2*hf,2)}, v13 offset:{h*16*K + st*2048 + hf*512}")
            rd(0); rd(1); rd(2)
            for st in range(8):
                A(f"s_waitcnt lgkmcnt({8 if st < 6 else 4*(7-st)})")
                for h in range(2):
                    for c in range(2):
                        d = v(ACC + 32 * c + 16 * h, 16)
                        A(f"v_mfma_f32_32x32x16_bf16 {d}, {v(XF+8*(st&3)+4*h,4)}, {v(CF+32*c+4*st,4)}, {'0' if st == 0 else d}")
                if st + 3 < 8: rd(st + 3)
            A("s_nop 11")
            for c in range(2):
                a0, a1 = ACC + 32 * c, ACC + 32 * c + 16
                for q4 in range(4):
                    for r in range(4):
                        A(f"v_add_f32 v{16+r}, v{a0+4*q4+r}, v{a1+4*q4+r}\nv_sub_f32 v{20+r}, v{a0+4*q4+r}, v{a1+4*q4+r}")
                    pk = 24 + 4 * (q4 & 1)
                    A(f"v_cvt_pk_bf16_f32 v{pk}, v16, v17\nv_cvt_pk_bf16_f32 v{pk+1}, v18, v19\nv_cvt_pk_bf16_f32 v{pk+2}, v20, v21\nv_cvt_pk_bf16_f32 v{pk+3}, v22, v23")
                    A(f"ds_write_b64 v{200+4*c+q4}, {v(pk,2)}\nds_write_b64 v{200+4*c+q4}, {v(pk+2,2)} offset:4096")
            A("s_waitcnt lgkmcnt(0)")
            for i in range(8): A(f"ds_read_b128 {v(208+4*i,4)}, v11 offset:{1024*i}")
            for i in range(8):
                pi, gi = divmod(i, 4)
                A(f"s_mov_b32 s{T0}, {WS_Z + gi*8*40960 + pi*20480 + n*4096}\ns_waitcnt lgkmcnt({7-i})")
                A(f"buffer_store_dwordx4 {v(208+4*i,4)}, v12, {s(RS,4)}, s{T0} offen sc1")
        self.ts(3)
        A("s_barrier")
        self.get_nonce(tmp=22)
        self.lds_arrive(C_B1, tmp=22)
        A("s_waitcnt vmcnt(0)")
        self.flag(WS_FL + PH_Z * 32768, tmp=21)
        self.ts(7)

    def nonce_issue_a1(self):
        self.nonce_issue(); self.nonce_finish()

    def attention(self):
        A = self.A
        A("L_ATT:")
        sH, sF0, sHP, sHO, sKV, sTOK = 44, 45, 46, 47, 48, 49
        Lc = A.label("nn")
        A(f"s_cmp_eq_u32 s{sHALF}, 1\ns_cbranch_scc1 {Lc}")
        self.get_nonce(tmp=10)
        A(f"{Lc}:")
        A(f"s_mul_i32 s{T0}, s{sC}, 5\ns_lshr_b32 s{T0}, s{T0}, 1\ns_and_b32 s{T0+1}, s{sC}, 1\ns_lshl_b32 s{sHO}, s{T0+1}, 3")
        A(f"s_mul_i32 s{T0+2}, s{sHALF}, 40\ns_add_u32 s{T0+2}, s{T0+2}, s{T0}\ns_add_u32 s{sF0}, s{T0+2}, s{T0+1}")
        A(f"s_add_u32 s{sHP}, s{T0+2}, 2\ns_cmp_eq_u32 s{T0+1}, 1\ns_cselect_b32 s{sHP}, s{T0+2}, s{sHP}")
        A(f"s_lshl_b32 s{sH}, s{sHALF}, 4\ns_add_u32 s{sH}, s{sH}, s{sC}\ns_mul_i32 s{sKV}, s{sHALF}, {L_KV[1]}")
        A(f"s_lshl_b32 s{sTOK}, s{sJ}, 7\ns_lshl_b32 s{T0+3}, s{sGW}, 5\ns_add_u32 s{sTOK}, s{sTOK}, s{T0+3}")
        A("v_and_b32 v18, 31, v2\nv_lshrrev_b32 v19, 5, v2")
        A(f"s_lshl_b32 s50, s{sGW}, 9\ns_add_u32 s51, s50, s{sKV}")
        A(f"v_lshl_add_u32 v9, v18, 4, s51\nv_mul_u32_u24 v10, {KPL[1]}, v19\nv_add_u32 v3, v9, v10")
        A(f"s_add_u32 s52, s{sHO}, {KPL[2]}\nv_add_u32 v9, s52, v9\ns_add_u32 s52, s50, {L_ONES+64}\nv_mov_b32 v10, s52\nv_cmp_eq_u32 vcc, 1, v19\ns_nop 1\nv_cndmask_b32 v4, v9, v10, vcc")
        A(f"v_bfe_u32 v9, v2, 2, 2\nv_lshl_add_u32 v9, v19, 2, v9\nv_lshl_add_u32 v9, v9, 4, s51")
        A(f"v_bfe_u32 v10, v2, 1, 1\nv_mul_u32_u24 v10, {VPL[1]-VPL[0]}, v10\nv_and_b32 v11, 1, v2\nv_lshl_add_u32 v10, v11, 3, v10\nv_add_u32 v10, {VPL[0]}, v10\nv_add_u32 v10, v9, v10")
        A(f"s_add_u32 s52, s{sHO}, {VPL[2]}\nv_add_u32 v9, s52, v9\nv_mov_b32 v11, {L_ONES}\nv_and_b32 v5, 3, v2\nv_cmp_eq_u32 vcc, 0, v5\ns_nop 1\nv_cndmask_b32 v9, v11, v9, vcc")
        A("v_and_b32 v5, 16, v2\nv_cmp_eq_u32 vcc, 0, v5\ns_nop 1\nv_cndmask_b32 v5, v9, v10, vcc")
        A(f"v_lshlrev_b32 v9, 2, v19\nv_sub_u32 v9, v9, v18\nv_add_u32 v9, 31, v9\nv_and_b32 v10, 3, v9\nv_mul_u32_u24 v10, 412, v10\nv_lshl_add_u32 v9, v9, 2, v10\nv_add_u32 v6, {L_MASK}, v9")
        A(f"v_add_u32 v9, s{sTOK}, v18\nv_lshlrev_b32 v129, 4, v9\nv_lshl_add_u32 v128, v19, 15, v129\nv_lshlrev_b32 v130, 4, v2")
        Lw = A.label("aw"); Lg = A.label("ag")
        A(f"s_lshl_b32 s52, s{sHALF}, 3\ns_add_u32 s52, s52, {C_QA}")
        A(f"s_cmp_lg_u32 s{sGW}, 0\ns_cbranch_scc1 {Lw}")
        A(f"v_lshrrev_b32 v9, 2, v2\nv_min_u32 v9, 13, v9\nv_add_u32 v10, 4, v9\nv_mul_u32_u24 v11, 43, v10\nv_lshrrev_b32 v11, 8, v11")
        A(f"v_mul_u32_u24 v12, 6, v11\nv_sub_u32 v10, v10, v12\nv_lshrrev_b32 v10, 1, v10\nv_min_u32 v12, 1, v11\nv_mul_u32_u24 v10, v10, v12")
        A(f"v_sub_u32 v10, s{sJ}, v10\nv_max_i32 v10, 0, v10")
        A(f"v_and_b32 v9, 1, v9\nv_lshl_add_u32 v9, v9, 1, s{T0}\nv_lshrrev_b32 v9, 3, v9\nv_mad_u32_u24 v9, v11, 5, v9\nv_lshl_add_u32 v9, v10, 4, v9")
        A(f"v_and_b32 v10, 3, v2\nv_lshlrev_b32 v10, 3, v10\nv_lshl_add_u32 v9, v9, 7, v10\ns_lshl_b32 s53, s{sHALF}, 15\ns_add_u32 s53, s53, {WS_FL + PH_QA*32768}\nv_add_u32 v12, s53, v9")
        self.poll(12, tmp=10)
        self.lds_wait(C_B1, 4)
        self.lds_arrive("s52")
        A(f"s_branch {Lg}\n{Lw}:")
        self.lds_wait("s52", 1)
        A(f"{Lg}:")
        self.ts(8)
        A(f"s_lshl_b32 s53, s{sF0}, 15\nbuffer_load_dwordx4 v[12:15], v128, {s(RS,4)}, s53 offen sc1")
        A(f"s_lshl_b32 s53, s{sHP}, 15\ns_add_u32 s53, s53, s{sHO}\nbuffer_load_dwordx2 v[16:17], v129, {s(RS,4)}, s53 offen sc1")
        A(f"s_lshr_b32 s{T0}, s{sGW}, 1\ns_and_b32 s{T0+1}, s{sGW}, 1\ns_mul_i32 s{T0+1}, s{T0+1}, 3")
        A(f"s_add_u32 s{T0+2}, s{T0}, 1\ns_mul_i32 s{T0+2}, s{T0+2}, {80*32768}")
        A(f"s_mul_i32 s54, s{T0}, {VPL[0]}\ns_add_u32 s54, s54, s{sKV}\ns_lshl_b32 s55, s{T0+1}, 10\ns_add_u32 s54, s54, s55")
        A(f"s_lshl_b32 s55, s{T0}, 6\ns_add_u32 s55, s55, 6144")
        A(f"s_lshl_b32 s56, s{sJ}, 1\ns_add_u32 s56, s56, s{T0+1}\ns_sub_u32 s56, s56, 4")
        for i in range(3):
            A(f"s_add_u32 s57, s56, {i}\ns_max_i32 s57, s57, 0\ns_lshl_b32 s57, s57, 10\ns_add_u32 s57, s57, s{T0+2}\ns_add_u32 s59, s54, {1024*i}")
            for p, (sp, add) in enumerate(((sF0, 0), (sF0, 32768), (sHP, 0))):
                A(f"s_lshl_b32 s58, s{sp}, 15\ns_add_u32 s58, s58, s57")
                if add: A(f"s_add_u32 s58, s58, {add}")
                A(f"s_mov_b32 m0, s59\ns_add_u32 s59, s59, s55\nbuffer_load_dwordx4 v130, {s(RS,4)}, s58 offen sc1 lds")
        A("s_add_u32 s52, s52, 4\ns_waitcnt vmcnt(0)")
        self.lds_arrive("s52")
        A(f"v_cmp_eq_u32 vcc, 1, v19\nv_mov_b32 v7, {hex(BIG)}\nv_mov_b32 v8, 0x3f800000\nv_cndmask_b32 v16, v16, 0, vcc\nv_cndmask_b32 v17, v17, v8, vcc")
        self.lds_wait("s52", 4)
        self.ts(9)
        KF = [20, 26]; VF = [32, 40]; S = [48, 64]; MK = 80; P = [96, 104]; O = 112
        def rdk(t):
            A(f"ds_read_b128 {v(KF[t&1],4)}, v3 offset:{t*512}\nds_read_b64 {v(KF[t&1]+4,2)}, v4 offset:{t*512}")
        def rdm(far):
            for q4 in range(4): A(f"ds_read_b128 {v(MK+4*q4,4)}, v6 offset:{32*q4 + (128 if far else 0)}")
        def rdv(t):
            for a in range(2):
                for h in range(2):
                    A(f"ds_read_b64_tr_b16 {v(VF[t&1]+4*a+2*h,2)}, v5 offset:{t*512+a*256+h*128}")
        def qka(t):
            c = v(MK, 16) if t in (0, 8) else "0"
            A(f"v_mfma_f32_32x32x16_bf16 {v(S[t&1],16)}, {v(KF[t&1],4)}, v[12:15], {c}")
        def qkb(t):
            A(f"v_mfma_f32_32x32x8bf16_1k {v(S[t&1],16)}, {v(KF[t&1]+4,2)}, v[16:17], {v(S[t&1],16)}")
        def mx(t):
            for r in range(0, 16, 2): A(f"v_max3_f32 v7, v7, v{S[t&1]+r}, v{S[t&1]+r+1}")
        rdm(True); rdk(0); rdk(1)
        for t in range(9):
            A(f"s_waitcnt lgkmcnt({0 if t == 8 else 6 if t == 3 else 2})")
            qka(t); qkb(t)
            if t + 2 < 9: rdk(t + 2)
            if t == 2: rdm(False)
            if t == 0: A("s_nop 7")
            if t >= 7: A("s_nop 1")
            if t > 0: mx(t - 1)
        rdk(1)
        A("s_nop 3")
        mx(8)
        rdm(True); rdk(0); rdv(0)
        A("v_mov_b32 v8, v7\ns_nop 1\nv_permlane32_swap_b32 v7, v8\ns_nop 1\nv_max_f32 v7, v7, v8")
        A("v_sub_f32 v9, 0, v7\nv_and_b32 v10, 0xffff0000, v9\nv_sub_f32 v9, v9, v10\nv_and_b32 v11, 0xffff0000, v9\nv_sub_f32 v9, v9, v11")
        A("v_lshrrev_b32 v10, 16, v10\nv_or_b32 v10, v10, v11\nv_lshrrev_b32 v9, 16, v9\nv_or_b32 v9, 0x3f800000, v9")
        A("v_cmp_eq_u32 vcc, 1, v19\ns_nop 1\nv_cndmask_b32 v16, v16, v10, vcc\nv_cndmask_b32 v17, v17, v9, vcc")
        A("s_waitcnt lgkmcnt(0)\ns_nop 0")
        self.ts(10)
        qka(0); qkb(0); rdk(2)
        A("s_nop 9")
        def ex(t, r0, n):
            for r in range(r0, r0 + n): A(f"v_exp_f32 v{S[t&1]+r}, v{S[t&1]+r}")
        def cv(t, a):
            for r in range(4): A(f"v_cvt_pk_bf16_f32 v{P[a]+r}, v{S[t&1]+8*a+2*r}, v{S[t&1]+8*a+2*r+1}")
        def pv(t, a):
            A(f"v_mfma_f32_32x32x16_bf16 {v(O,16)}, {v(VF[t&1]+4*a,4)}, {v(P[a],4)}, {'0' if (t == 0 and a == 0) else v(O,16)}")
        for t in range(9):
            if t < 8:
                if t > 0: A(f"s_waitcnt lgkmcnt({2 if t < 7 else 0})")
                qka(t + 1)
            else:
                A("s_waitcnt lgkmcnt(0)")
            ex(t, 0, 3)
            if t > 0: pv(t - 1, 1)
            ex(t, 3, 3)
            if t < 8: qkb(t + 1)
            if t == 1: rdm(False)
            if t < 8: rdv(t + 1)
            if t + 3 < 9: rdk(t + 3)
            ex(t, 6, 3)
            cv(t, 0)
            ex(t, 9, 3)
            pv(t, 0)
            ex(t, 12, 4)
            A("s_nop 0")
            cv(t, 1)
        A("s_nop 1")
        pv(8, 1)
        A("s_nop 11")
        A(f"v_mov_b32 v9, v{O+8}\nv_mov_b32 v10, v{O+8}\ns_nop 1\nv_permlane32_swap_b32 v9, v10\ns_nop 1\nv_rcp_f32 v10, v10\ns_nop 0")
        for r in range(12): A(f"v_mul_f32 v{O+r}, v10, v{O+r}")
        for r in range(6): A(f"v_cvt_pk_bf16_f32 v{96+r}, v{O+2*r}, v{O+2*r+1}")
        A(f"s_lshl_b32 s53, s{sH}, 16\ns_add_u32 s53, s53, {WS_OF}\nbuffer_store_dwordx4 v[96:99], v128, {s(RS,4)}, s53 offen sc1")
        A(f"s_lshl_b32 s53, s{sH}, 14\ns_add_u32 s53, s53, {WS_OT}\nv_lshrrev_b32 v9, 1, v129\ns_mov_b32 exec_hi, 0")
        A(f"buffer_store_dwordx2 v[100:101], v9, {s(RS,4)}, s53 offen sc1\ns_mov_b32 exec_hi, -1")
        self.ts(11)
        A(f"s_lshl_b32 s53, s{sHALF}, 15\ns_add_u32 s53, s53, {WS_FL + PH_OA*32768}\ns_waitcnt vmcnt(0)")
        self.flag("s53", tmp=9)
        self.ts(12)
        A(f"s_cmp_eq_u32 s{sHALF}, 1\ns_cbranch_scc1 L_OP")

    def a2(self):
        A = self.A
        sU, sEB, sZB, sPASS = 44, 45, 46, 47
        self.lds_arrive(C_ATA)
        A(f"s_lshl_b32 s{sU}, s{sX}, 3\ns_and_b32 s{T0}, s{sLOC}, 7\ns_add_u32 s{sU}, s{sU}, s{T0}\ns_lshr_b32 s{sEB}, s{sLOC}, 3")
        A(f"s_mul_i32 s{sZB}, s{sGW}, 10240\ns_add_u32 s{sZB}, s{sZB}, {L_Z}")
        Lw = A.label("zw"); Lg = A.label("zg")
        A(f"s_cmp_lg_u32 s{sGW}, 0\ns_cbranch_scc1 {Lw}")
        A(f"v_lshrrev_b32 v9, 2, v2\nv_lshlrev_b32 v9, 11, v9\nv_and_b32 v10, 3, v2\nv_lshl_add_u32 v9, v10, 3, v9\nv_add_u32 v12, {WS_FL + PH_Z*32768 + 15*128}, v9")
        self.poll(12, tmp=10)
        self.lds_wait(C_ATA, 4)
        if self.opt.get('z_after_kvb', 1): self.lds_wait(C_KVB, 4)
        self.lds_arrive(C_ZF)
        A(f"s_branch {Lg}\n{Lw}:")
        self.lds_wait(C_ZF, 1)
        A(f"{Lg}:")
        self.ts(13)
        A(f"s_mov_b32 s{sPASS}, 0")
        A(f"s_and_b32 s{T0}, s{sGW}, 1\ns_lshl_b32 s{T0}, s{T0}, 1\ns_lshr_b32 s{T0+1}, s{sGW}, 1\ns_add_u32 s{T0}, s{T0}, s{T0+1}\ns_mul_i32 s{T0}, s{T0}, 10240")
        A(f"s_mul_i32 s48, s{sU}, 40960\ns_add_u32 s48, s48, s{T0}\ns_add_u32 s48, s48, {WS_Z}")
        A("v_and_b32 v18, 15, v2\nv_lshrrev_b32 v19, 4, v2")
        A(f"v_lshrrev_b32 v9, 2, v2\nv_lshlrev_b32 v9, 6, v9\nv_and_b32 v10, 1, v19\nv_lshl_add_u32 v9, v10, 5, v9\nv_and_b32 v10, 3, v2\nv_lshl_add_u32 v9, v10, 3, v9\nv_add_u32 v3, s{sZB}, v9\nv_xor_b32 v4, 32, v3")
        A(f"v_mul_u32_u24 v9, 208, v18\nv_lshl_add_u32 v9, v19, 4, v9\nv_add_u32 v5, s{sZB}, v9")
        A("L_A2P:")
        for i in range(10):
            A(f"s_add_u32 m0, s{sZB}, {1024*i}\ns_add_u32 s{T0}, s48, {1024*i}\nbuffer_load_dwordx4 v130, {s(RS,4)}, s{T0} offen sc1 lds")
        A(f"v_lshl_add_u32 v9, v18, 1, s{sPASS}\nv_cvt_f32_u32 v9, v9\nv_mul_f32 v9, {fl(1/32)}, v9\nv_lshlrev_b32 v10, 1, v19\nv_cvt_f32_u32 v10, v10\nv_mul_f32 v10, v9, v10")
        A(f"s_cmp_eq_u32 s{sPASS}, 0\ns_cselect_b32 s50, 1.0, 0\ns_cselect_b32 s52, 0, 1.0\ns_cmp_eq_u32 s{sU}, 0\ns_cselect_b32 s51, 0, 1.0")
        for p in range(4):
            A(f"v_fmamk_f32 v11, v9, {fl(8*(p>>1) + (p&1))}, v10\nv_cos_f32 v12, v11\nv_sin_f32 v13, v11\ns_nop 0")
            A(f"v_mul_f32 v14, s50, v12\nv_mul_f32 v15, s51, v13\nv_fmac_f32 v15, s52, v12\nv_cvt_pk_bf16_f32 v{20+p}, v14, v15")
            A(f"v_mul_f32 v14, s50, v13\nv_mul_f32 v15, s51, v12\nv_mul_f32 v16, s52, v13\nv_sub_f32 v15, v15, v16\nv_cvt_pk_bf16_f32 v{24+p}, -v14, v15")
        ZF, D, U, AP, AQ = 32, 72, 88, 104, 116
        A("s_waitcnt vmcnt(0)")
        self.ts(14)
        for dt in range(5):
            for tau in range(2):
                for h in range(2):
                    A(f"ds_read_b64_tr_b16 {v(ZF+8*dt+4*tau+2*h,2)}, v{3+tau} offset:{dt*2048 + h*1024}")
            if dt == 2: A("s_waitcnt lgkmcnt(4)")
        def sa(dt):
            for c in range(2):
                for tau in range(2):
                    A(f"v_mfma_f32_16x16x32_bf16 {v(D+8*c+4*tau,4)}, {v(ZF+8*dt+4*tau,4)}, {v(20+4*c,4)}, 0")
        def cvu(dt):
            for i in range(8): A(f"v_cvt_pk_bf16_f32 v{U+8*(dt&1)+i}, v{D+2*i}, v{D+2*i+1}")
        def sb(dt):
            for et in range(3):
                for c, acc_ in ((0, AP), (1, AQ)):
                    d = v(acc_ + 4 * et, 4)
                    A(f"v_mfma_f32_16x16x32_bf16 {d}, {v(self.cfrag(dt,et,c),4)}, {v(U+8*(dt&1)+4*c,4)}, {'0' if dt == 0 else d}")
        sa(0); A("s_waitcnt lgkmcnt(0)\ns_nop 6"); cvu(0)
        for dt in range(5):
            if dt < 4: sa(dt + 1)
            else: A("s_nop 1")
            sb(dt)
            if dt < 4:
                A("s_nop 1"); cvu(dt + 1)
        A("s_nop 7")
        for et in range(3):
            for r in range(4):
                A(f"v_add_f32 v{32+4*et+r}, v{AP+4*et+r}, v{AQ+4*et+r}\nv_sub_f32 v{44+4*et+r}, v{AP+4*et+r}, v{AQ+4*et+r}")
        for pm in range(2):
            for et in range(3):
                A(f"ds_write_b128 v5, {v(32+12*pm+4*et,4)} offset:{pm*3328 + 64*et}")
        A("s_waitcnt lgkmcnt(0)")
        self.lds_arrive(C_A2)
        A(f"s_and_b32 s50, s{sGW}, 1\ns_lshr_b32 s51, s{sGW}, 1\ns_xor_b32 s52, s50, s51\ns_mul_i32 s52, s52, 3328\ns_add_u32 s52, s52, {L_Z}")
        A(f"s_lshl_b32 s53, s{sPASS}, 6\ns_add_u32 s53, s53, s{sU}\ns_sub_u32 s54, 2048, s53\ns_cmp_eq_u32 s51, 0\ns_cselect_b32 s53, s53, s54\ns_cselect_b32 s54, 1, -1\ns_mul_i32 s54, s54, {128*2560}")
        A(f"s_mul_i32 s53, s53, 2560\ns_mul_i32 s55, s{sEB}, 160\ns_sub_u32 s56, {1280-16}, s55\ns_cmp_eq_u32 s50, 0\ns_cselect_b32 s55, s55, s56\ns_cselect_b32 s56, 16, -16\ns_add_u32 s53, s53, s55")
        for i in range(3):
            A(f"v_add_u32 v9, {64*i}, v2\nv_min_u32 v9, 159, v9\nv_mul_u32_u24 v10, 6554, v9\nv_lshrrev_b32 v10, 16, v10\nv_mul_u32_u24 v11, 10, v10\nv_sub_u32 v11, v9, v11")
            A(f"v_mul_u32_u24 v9, 208, v10\nv_lshl_add_u32 v9, v11, 4, v9\nv_add_u32 v{20+i}, s52, v9")
            A(f"v_mul_lo_u32 v10, v10, s54\nv_mul_lo_u32 v11, v11, s56\nv_add3_u32 v{24+i}, v10, v11, s53")
        A(f"s_add_u32 s57, s{sPASS}, 1\ns_lshl_b32 s57, s57, 2")
        self.lds_wait(C_A2, "s57")
        Lm = A.label("mir"); Ld = A.label("std")
        A(f"s_cmp_lg_u32 s{sU}, 0\ns_cselect_b32 s{T0}, 0, s51\ns_cmp_lg_u32 s{T0}, 0\ns_cbranch_scc1 {Ld}")
        A(f"s_cmp_eq_u32 s50, 1\ns_cbranch_scc1 {Lm}")
        for mir in range(2):
            if mir: A(f"{Lm}:")
            for i in range(3):
                b = 32 + 16 * i
                for kh in range(2):
                    if mir:
                        A(f"v_add_u32 v9, {20480*kh}, v{20+i}\nds_read2_b32 {v(b+4*kh,2)}, v9 offset0:1 offset1:2\nds_read2_b32 {v(b+4*kh+2,2)}, v9 offset0:3 offset1:4")
                    else:
                        A(f"ds_read_b128 {v(b+4*kh,4)}, v{20+i} offset:{20480*kh}")
                    A(f"ds_read_b128 {v(b+8+4*kh,4)}, v{20+i} offset:{20480*kh+10240}")
                if mir and i == 1: A("s_waitcnt lgkmcnt(6)")
            A("s_waitcnt lgkmcnt(0)")
            for i in range(3):
                b = 32 + 16 * i
                for r in range(4): A(f"v_add_f32 v{b+r}, v{b+r}, v{b+4+r}\nv_add_f32 v{b+8+r}, v{b+8+r}, v{b+12+r}")
                for r in range(4):
                    if mir: A(f"v_cvt_pk_bf16_f32 v{b+4+r}, v{b+3-r}, v{b+11-r}")
                    else: A(f"v_cvt_pk_bf16_f32 v{b+4+r}, v{b+r}, v{b+8+r}")
                if i == 2: A("s_mov_b32 exec_hi, 0")
                A(f"buffer_store_dwordx4 {v(b+4,4)}, v{24+i}, {s(ROUT,4)}, 0 offen sc1")
            A("s_mov_b32 exec_hi, -1")
            if not mir: A(f"s_branch {Ld}")
        A(f"{Ld}:")
        Le = A.label("a2e")
        A(f"s_add_u32 s{T0}, s{sU}, s{sPASS}\ns_cmp_lg_u32 s{T0}, 0\ns_cbranch_scc1 {Le}")
        self.lds_arrive(C_A2B)
        self.lds_wait(C_A2B, 4)
        A(f"s_mov_b32 s{sPASS}, 1\ns_branch L_A2P\n{Le}:")
        self.ts(15)

    def outproj(self):
        A = self.A
        A("L_OP:")
        OF, AC = 32, 72
        sHF = 44
        A("v_and_b32 v18, 15, v2\nv_lshrrev_b32 v19, 4, v2")
        A(f"s_lshl_b32 s45, s{sJ}, 7\ns_lshl_b32 s{T0}, s{sW}, 4\ns_add_u32 s45, s45, s{T0}")
        A("v_add_u32 v9, s45, v18\nv_lshlrev_b32 v10, 15, v19\nv_lshl_add_u32 v3, v9, 4, v10\nv_lshl_add_u32 v4, v9, 3, v10")
        A(f"v_bfe_u32 v9, v2, 2, 2\nv_and_b32 v10, 3, v2\nv_lshlrev_b32 v10, 3, v10\nv_add_u32 v10, {L_WO}, v10")
        A("v_lshrrev_b32 v11, 1, v19\nv_mul_u32_u24 v11, 24, v11\nv_and_b32 v12, 1, v19\nv_lshl_add_u32 v11, v12, 2, v11\nv_add_u32 v11, v11, v9\nv_mul_u32_u24 v11, 80, v11\nv_add_u32 v5, v11, v10")
        A("v_mul_u32_u24 v11, 40, v19\nv_add3_u32 v11, v11, v9, 16\nv_mul_u32_u24 v11, 80, v11\nv_add_u32 v6, v11, v10")
        A(f"s_lshl_b32 s{T0}, s{sJ}, 11\ns_lshr_b32 s{T0+1}, s{sW}, 1\ns_lshl_b32 s{T0+1}, s{T0+1}, 3\ns_add_u32 s{T0}, s{T0}, s{T0+1}\ns_add_u32 s{T0}, s{T0}, {WS_FL + PH_OA*32768}")
        A(f"v_lshl_add_u32 v7, v18, 7, s{T0}")
        A(f"s_mul_i32 s46, s{sW}, 1280\ns_add_u32 s46, s46, {L_STG}\nv_mul_u32_u24 v9, 80, v18\nv_lshl_add_u32 v9, v19, 3, v9\nv_add_u32 v20, s46, v9\nv_lshl_add_u32 v21, v2, 4, s46")
        A(f"s_mul_i32 s47, s45, 2560\ns_mul_i32 s{T0}, s{sC}, 80\ns_add_u32 s47, s47, s{T0}\ns_add_u32 s47, s47, 1280")
        for i in range(2):
            A(f"v_add_u32 v9, {64*i}, v2\nv_mul_u32_u24 v10, 13108, v9\nv_lshrrev_b32 v10, 16, v10\nv_mul_u32_u24 v11, 5, v10\nv_sub_u32 v11, v9, v11\nv_mul_u32_u24 v10, 2560, v10\nv_lshl_add_u32 v{22+i}, v11, 4, v10")
        for i in range(12): A(f"v_mov_b32 v{AC+i}, 0")
        self.lds_wait(C_KVA, 4)
        A(f"s_mov_b32 s{sHF}, 0\nL_OPH:")
        n = 0
        for st in range(10):
            for t in range(3):
                for h in range(2):
                    off = (40 * st + 8 * h) * 80 + 32 * t if st < 8 else (160 * (st - 8) + 4 * h) * 80 + 32 * t
                    A(f"ds_read_b64_tr_b16 {v(CONST+(st*3+t)*4+2*h,2)}, v{5 if st < 8 else 6} offset:{off}")
                    n += 1
                    if n % 12 == 0: A("s_waitcnt lgkmcnt(3)")
        self.poll(7, tmp=10)
        if self.diag:
            L1 = A.label("t"); L2 = A.label("t")
            A(f"s_cmp_eq_u32 s{sHF}, 0\ns_cbranch_scc0 {L1}"); self.ts(16); A(f"s_branch {L2}\n{L1}:"); self.ts(18); A(f"{L2}:")
        A(f"s_lshl_b32 s48, s{sHF}, 20\ns_add_u32 s48, s48, {WS_OF}\ns_lshl_b32 s49, s{sHF}, 18\ns_add_u32 s49, s49, {WS_OT}")
        for st in range(8):
            A(f"s_add_u32 s{T0}, s48, {4*st*32768}\nbuffer_load_dwordx4 {v(OF+4*st,4)}, v3, {s(RS,4)}, s{T0} offen sc1")
        for st in range(2):
            for h in range(2):
                A(f"s_add_u32 s{T0}, s49, {(8*st+h)*16384}\nbuffer_load_dwordx2 {v(OF+32+4*st+2*h,2)}, v4, {s(RS,4)}, s{T0} offen sc1")
        A("s_waitcnt lgkmcnt(0)")
        for st in range(10):
            A(f"s_waitcnt vmcnt({11-st if st < 8 else 2*(9-st)})")
            for t in range(3):
                A(f"v_mfma_f32_16x16x32_bf16 {v(AC+4*t,4)}, {v(CONST+(st*3+t)*4,4)}, {v(OF+4*st,4)}, {v(AC+4*t,4)}")
        A(f"v_add_u32 v5, 25600, v5\nv_add_u32 v6, 25600, v6\nv_add_u32 v7, 32768, v7")
        A(f"s_add_u32 s{sHF}, s{sHF}, 1\ns_cmp_eq_u32 s{sHF}, 1\ns_cbranch_scc1 L_OPH")
        A("s_nop 3")
        self.ts(19)
        for i in range(6): A(f"v_cvt_pk_bf16_f32 v{24+i}, v{AC+2*i}, v{AC+2*i+1}")
        A("ds_write_b64 v20, v[24:25]\nds_write_b64 v20, v[26:27] offset:32\ns_mov_b32 exec_hi, 0\nds_write_b64 v20, v[28:29] offset:64\ns_mov_b32 exec_hi, -1")
        A("s_waitcnt lgkmcnt(0)\nds_read_b128 v[32:35], v21\nds_read_b128 v[36:39], v21 offset:1024\ns_waitcnt lgkmcnt(1)")
        A(f"buffer_store_dwordx4 v[32:35], v22, {s(ROUT,4)}, s47 offen sc1\ns_mov_b64 exec, 0xffff\ns_waitcnt lgkmcnt(0)")
        A(f"buffer_store_dwordx4 v[36:39], v23, {s(ROUT,4)}, s47 offen sc1\ns_mov_b64 exec, -1")
        if self.diag:
            self.ts(20)
            A("s_waitcnt vmcnt(0)")
            self.ts(21)
            A(f"s_lshl_b32 s{T0}, s2, 3\ns_add_u32 s{T0}, s{T0}, s{sW}\ns_lshl_b32 s{T0}, s{T0}, 8\ns_add_u32 s{T0}, s{T0}, {WS_TS}")
            A(f"v_lshlrev_b32 v9, 2, v2\nbuffer_store_dword v{vTS}, v9, {s(RS,4)}, s{T0} offen")
        A("L_end:\ns_endpgm\nL_codeend:")

    def build(self):
        A = self.A
        A('.amdgcn_target "amdgcn-amd-amdhsa--gfx950"\n.text')
        self.prologue()
        self.b1_loader()
        self.a1_loader()
        self.c_init()
        self.b1_consumer()
        self.a1_consumer()
        self.attention()
        self.a2()
        self.outproj()
        head = f"; fused FNet (factorised DFT) + sliding-window attention, one launch, 256 co-resident workgroups\n; @launch grid=(256,1,1) block=(512,1,1) lds={LDS_BYTES}\n"
        return head + A.text() + '.section .rodata,"a"\n.p2align 6\n' + kernel_desc(NAME, 256, 102, 256)


if __name__ == "__main__":
    out = sys.argv[1]
    diag = len(sys.argv) > 2 and sys.argv[2] == "diag"
    opt = eval(sys.argv[3]) if len(sys.argv) > 3 else {}
    open(out, "w").write(G(diag, opt).build())
```

```python
class Asm:
    def __init__(self):
        self.L = []
        self.uid = 0
    def __call__(self, s):
        for ln in s.split("\n"):
            ln = ln.strip()
            if ln:
                self.L.append(ln if ln.endswith(":") or ln.startswith(".") or ln.startswith(";") else "    " + ln)
    def label(self, base):
        self.uid += 1
        return f"L_{base}_{self.uid}"
    def text(self):
        return "\n".join(self.L) + "\n"
    def srd(self, s, lo, hi, nbytes):
        self(f"s_mov_b32 s{s}, s{lo}\ns_mov_b32 s{s+1}, s{hi}\ns_mov_b32 s{s+2}, {nbytes}\ns_mov_b32 s{s+3}, 0x20000")

def v(a, n=1):
    return f"v{a}" if n == 1 else f"v[{a}:{a+n-1}]"
def s(a, n=1):
    return f"s{a}" if n == 1 else f"s[{a}:{a+n-1}]"
def acc(a, n=1):
    return f"a{a}" if n == 1 else f"a[{a}:{a+n-1}]"

def kernel_begin(A, name):
    A(f".globl {name}\n.p2align 8\n.type {name},@function\n{name}:")

def kernel_desc(name, vgpr, sgpr=96, accum=None):
    accum = accum if accum is not None else (vgpr + 3) // 4 * 4
    return f""".amdhsa_kernel {name}
  .amdhsa_next_free_vgpr {vgpr}
  .amdhsa_next_free_sgpr {sgpr}
  .amdhsa_accum_offset {accum}
  .amdhsa_group_segment_fixed_size 0
  .amdhsa_kernarg_size 88
  .amdhsa_user_sgpr_count 2
  .amdhsa_user_sgpr_kernarg_segment_ptr 1
  .amdhsa_system_sgpr_workgroup_id_x 1
.end_amdhsa_kernel
"""

KA = dict(Ax=0, Sre=8, Sim=16, Dre=24, Dim=32, Bx=40, Wqkv=48, Wo=56, out=64, dbg=72, ws=80)
NB = dict(Ax=2621440, Sre=8388608, Sim=8388608, Dre=819200, Dim=819200, Bx=2621440, Wqkv=2457600, Wo=819200,
          out=5242880, dbg=256, ws=268435456)


class Sb:
    def __init__(self, A, name, cap):
        self.A, self.name, self.cap = A, name, cap
        self.q = []
    def op(self, tag, text):
        if len(self.q) >= self.cap:
            self.wait(self.cap - 1)
        self.A(text); self.q.append(tag)
    def wait(self, n):
        if n < len(self.q):
            self.A(f"s_waitcnt {self.name}({n})")
            self.q = self.q[len(self.q) - n:] if n else []
    def need(self, *tags):
        idx = [i for i, t in enumerate(self.q) if t in tags]
        if idx: self.wait(len(self.q) - 1 - max(idx))
    def drain(self): self.wait(0)

def weave(slots, fillers, per):
    f = list(fillers)
    for sl in slots:
        sl()
        for _ in range(per):
            if f: f.pop(0)()
    for x in f: x()
```

```python
import sys, math, struct
from lib import *

NAME = "concat_heads__spectral_fnet__sliding_block__prompt_kernel"
def f2u(x): return struct.unpack("<I", struct.pack("<f", x))[0]
def fl(x): return hex(f2u(x))
QSCALE = 20 ** -0.5 * math.log2(math.e)
BIG = 0xf149f2ca
BIGH = 0xf149

WS_QKV = 0
WS_OF = 8 << 20
WS_OT = 10 << 20
WS_Z = 11 << 20
ZP = 40960 + 128
WS_FQ = 14 << 20
WS_FO = WS_FQ + (256 << 10)
WS_FZ = WS_FO + (1 << 20)
WS_TS = 16 << 20

K = 1024
L_SLOT = [104 * K, 128 * K, 56 * K, 80 * K]
KPL = [0, 6144, 12288]
VPL = [18432, 24576 + 64, 30720 + 128]
L_KV = [0, 36992]
L_WO = 73984
L_STG = 0
L_ONES = L_WO + 81920
L_MASK = L_ONES + 6144
L_CNT = L_MASK + 1664
C_NONCE, C_B1, C_QA, C_KA, C_KVA, C_QB, C_KB, C_KVB, C_ATA, C_A2, C_ZF, C_FA, C_FB, C_S4, C_S0 = [L_CNT + o for o in (0, 8, 12, 16, 20, 24, 28, 32, 36, 64, 44, 48, 52, 56, 60)]
L_A1X = [106 * K, 40 * K, 74 * K, 0, 106 * K]
LDS_BYTES = 160 * K

sW, sX, sLOC, sJ, sC = 3, 4, 5, 6, 7
RX, RW, RS, RO, ROUT, RD = 8, 12, 16, 20, 24, 28
sN = 32
sGW = 34
sHALF = 35
sRID = 36
sK0 = 37
sRET = 96
T0 = 40
sSPIN = 60
CONST = 136
vTS = 1
SPIN_MAX = 400000


class G:
    def __init__(self, diag=False, opt=None):
        self.A = Asm()
        self.diag = diag
        self.opt = opt or {}

    def ts(self, i):
        if self.diag:
            self.A(f"s_memrealtime s[98:99]\ns_memtime s[100:101]\ns_waitcnt lgkmcnt(0)\nv_writelane_b32 v{vTS}, s98, {i}\nv_writelane_b32 v{vTS}, s100, {32+i}")

    def ts2(self, i):
        if self.opt.get('fine'): self.ts(i)

    def lds_arrive(self, cnt, tmp=9):
        A = self.A
        A(f"v_mov_b32 v{tmp}, {cnt}\nv_mov_b32 v{tmp+1}, 1\ns_mov_b64 exec, 1\nds_add_u32 v{tmp}, v{tmp+1}\ns_mov_b64 exec, -1")

    def lds_wait(self, cnt, n, tmp=9):
        A = self.A
        L = A.label("lw"); E = A.label("lwd")
        A(f"v_mov_b32 v{tmp}, {cnt}\ns_mov_b32 s{sSPIN}, 0")
        A(f"{L}:\nds_read_b32 v{tmp+1}, v{tmp}\ns_add_u32 s{sSPIN}, s{sSPIN}, 1\ns_waitcnt lgkmcnt(0)\nv_readfirstlane_b32 s{T0}, v{tmp+1}")
        A(f"s_cmp_gt_u32 s{sSPIN}, {SPIN_MAX*4}\ns_cbranch_scc1 {E}\ns_cmp_lt_u32 s{T0}, {n}\ns_cbranch_scc1 {L}\n{E}:")

    def poll(self, vaddr, tmp=10):
        A = self.A
        L = A.label("pl"); E = A.label("pld")
        A(f"s_mov_b32 s{sSPIN}, 0")
        A(f"{L}:\nbuffer_load_dwordx2 {v(tmp,2)}, v{vaddr}, {s(RS,4)}, 0 offen sc1\ns_add_u32 s{sSPIN}, s{sSPIN}, 1\ns_waitcnt vmcnt(0)")
        A(f"v_cmp_ne_u64 vcc, {s(sN,2)}, {v(tmp,2)}\ns_cmp_gt_u32 s{sSPIN}, {SPIN_MAX}\ns_cbranch_scc1 {E}\ns_cmp_eq_u64 vcc, 0\ns_cbranch_scc0 {L}\n{E}:")

    def flag(self, soff, tmp=9):
        A = self.A
        A(f"v_mov_b32 v{tmp}, {soff}\nv_mov_b32 v{tmp+1}, s{sN}\nv_mov_b32 v{tmp+2}, s{sN+1}\ns_mov_b64 exec, 1")
        A(f"buffer_store_dwordx2 {v(tmp+1,2)}, v{tmp}, {s(RS,4)}, 0 offen sc1\ns_mov_b64 exec, -1")

    def push(self, vaddr, tmp):
        self.A(f"v_mov_b32 v{tmp}, s{sN}\nv_mov_b32 v{tmp+1}, s{sN+1}\nbuffer_store_dwordx2 {v(tmp,2)}, v{vaddr}, {s(RS,4)}, 0 offen sc1")

    def spoll(self, loads, words, cond2=None):
        A = self.A
        L = A.label("sp"); E = A.label("spd")
        A(f"s_mov_b32 s{sSPIN}, 0\n{L}:\ns_add_u32 s{sSPIN}, s{sSPIN}, 1\ns_cmp_gt_u32 s{sSPIN}, {SPIN_MAX}\ns_cbranch_scc1 {E}")
        if self.opt.get('psleep'): A(f"s_sleep {self.opt['psleep']}")
        for w, d, so, imm in loads:
            A(f"s_buffer_load_dwordx{w} {s(d,w)}, {s(RS,4)}, {so} offset:{imm} glc")
        A("s_waitcnt lgkmcnt(0)")
        for d in words: A(f"s_cmp_lg_u64 {s(d,2)}, {s(sN,2)}\ns_cbranch_scc1 {L}")
        if cond2:
            A(f"s_cmp_eq_u32 {cond2[0]}, 0\ns_cbranch_scc1 {E}")
            for d in cond2[1]: A(f"s_cmp_lg_u64 {s(d,2)}, {s(sN,2)}\ns_cbranch_scc1 {L}")
        A(f"{E}:")

    def get_nonce(self, tmp=10):
        A = self.A
        A(f"v_mov_b32 v{tmp-1}, {C_NONCE}\nds_read_b64 {v(tmp,2)}, v{tmp-1}\ns_waitcnt lgkmcnt(0)")
        A(f"v_readfirstlane_b32 s{sN}, v{tmp}\nv_readfirstlane_b32 s{sN+1}, v{tmp+1}")

    def nonce_issue(self, w=0):
        A = self.A
        L = A.label("ni")
        A(f"s_cmp_lg_u32 s{sW}, {w}\ns_cbranch_scc1 {L}\nv_mov_b32 v16, 0\nbuffer_load_dwordx2 v[18:19], v16, {s(RD,4)}, 0 offen sc1\n{L}:")

    def nonce_finish(self, w=0):
        A = self.A
        L = A.label("nf"); R = A.label("nr"); E = A.label("ne")
        A(f"s_cmp_lg_u32 s{sW}, {w}\ns_cbranch_scc1 {L}\ns_mov_b32 s{sSPIN}, 0")
        A(f"{R}:\ns_waitcnt vmcnt(0)\nv_cmp_eq_u64 vcc, 0, v[18:19]\ns_add_u32 s{sSPIN}, s{sSPIN}, 1\ns_cmp_eq_u64 vcc, 0\ns_cbranch_scc1 {E}")
        A(f"s_cmp_gt_u32 s{sSPIN}, {SPIN_MAX}\ns_cbranch_scc1 {E}\nv_mov_b32 v16, 0\nbuffer_load_dwordx2 v[18:19], v16, {s(RD,4)}, 0 offen sc1\ns_branch {R}")
        A(f"{E}:\nv_mov_b32 v16, {C_NONCE}\nds_write_b64 v16, v[18:19]\ns_waitcnt lgkmcnt(0)\n{L}:")

    def prologue(self):
        A = self.A
        kernel_begin(A, NAME)
        A("s_cmp_ge_u32 s2, 256\ns_cbranch_scc1 L_end")
        A("s_load_dwordx2 s[64:65], s[0:1], 0\ns_load_dwordx4 s[68:71], s[0:1], 40\ns_load_dwordx8 s[72:79], s[0:1], 56")
        if self.diag:
            A(f"s_memrealtime s[98:99]\nv_mov_b32 v{vTS}, 0")
        A(f"v_lshrrev_b32 v3, 6, v0\nv_and_b32 v2, 63, v0\ns_and_b32 s{sX}, s2, 7\nv_readfirstlane_b32 s{sW}, v3")
        if self.opt.get('map', '2x16') == '2x16':
            A(f"s_lshr_b32 s{sLOC}, s2, 3\ns_lshr_b32 s{sC}, s2, 4\ns_and_b32 s{sJ}, s{sLOC}, 1\ns_lshl_b32 s{T0}, s{sX}, 1\ns_add_u32 s{sJ}, s{sJ}, s{T0}")
        else:
            A(f"s_lshr_b32 s{sLOC}, s2, 3\ns_lshr_b32 s{sC}, s2, 5\ns_lshl_b32 s{sC}, s{sC}, 1\ns_and_b32 s{T0}, s2, 1\ns_add_u32 s{sC}, s{sC}, s{T0}")
            A(f"s_and_b32 s{sJ}, s{sLOC}, 3\ns_and_b32 s{T0}, s2, 6\ns_lshl_b32 s{T0}, s{T0}, 1\ns_add_u32 s{sJ}, s{sJ}, s{T0}")
        A(f"s_lshl_b32 s{sRID}, s{sJ}, 4\ns_add_u32 s{sRID}, s{sRID}, s{sC}\ns_and_b32 s{sGW}, s{sW}, 3")
        for r, nb in ((RX, NB['Bx']), (RW, NB['Wqkv']), (RS, NB['ws']), (RO, NB['Wo']), (ROUT, NB['out']), (RD, NB['dbg'])):
            A(f"s_mov_b32 s{r+2}, {nb}\ns_mov_b32 s{r+3}, 0x20000")
        A("v_lshrrev_b32 v3, 3, v2\nv_and_b32 v4, 7, v2")
        A("s_waitcnt lgkmcnt(0)")
        if self.diag:
            A(f"v_writelane_b32 v{vTS}, s98, 0")
        A(f"s_cmp_eq_u32 s{sC}, 15\ns_cselect_b32 s{RX}, s64, s68\ns_cselect_b32 s{RX+1}, s65, s69")
        for r, p in ((RW, 70), (RO, 72), (ROUT, 74), (RD, 76), (RS, 78)):
            A(f"s_mov_b32 s{r}, s{p}\ns_mov_b32 s{r+1}, s{p+1}")
        A(f"s_cmp_lt_u32 s{sW}, 4\ns_cbranch_scc1 L_C")
        A(f"s_mov_b32 s{sHALF}, 0\ns_cmp_eq_u32 s{sC}, 15\ns_cbranch_scc1 L_A1L")

    def constgen_setup(self):
        A = self.A
        A(f"s_lshl_b32 s{T0}, s{sX}, 1\ns_add_u32 s{T0}, s{T0}, s{sLOC}\ns_and_b32 s{T0}, s{T0}, 3\ns_mul_i32 s{T0}, s{T0}, 80\ns_and_b32 s{T0+1}, s{sGW}, 1\ns_add_u32 s{T0}, s{T0}, s{T0+1}")
        A(f"s_lshr_b32 s{T0+1}, s{sGW}, 1\ns_lshl_b32 s{T0+2}, s{T0+1}, 5\ns_mul_i32 s{T0+1}, s{T0+1}, 192")
        A(f"v_and_b32 v30, 15, v2\nv_lshl_add_u32 v30, v30, 1, s{T0}\nv_lshrrev_b32 v31, 4, v2\nv_lshl_add_u32 v23, v31, 2, s{T0+2}\nv_lshl_add_u32 v31, v31, 2, s{T0+1}\nv_cvt_f32_u32 v31, v31\nv_cvt_f32_u32 v23, v23")
        for et in range(3):
            A(f"v_add_u32 v{24+et}, {32*et}, v30\nv_cvt_f32_u32 v{24+et}, v{24+et}\nv_mul_f32 v{24+et}, {fl(1/640)}, v{24+et}\nv_mul_f32 v{27+et}, v{24+et}, v31\nv_mul_f32 v{20+et}, v{24+et}, v23")

    def cfrag(self, st, et, kind):
        return CONST + ((st * 3 + et) * 2 + kind) * 4

    def constgen(self, n):
        A = self.A
        for _ in range(n):
            if not self.cg: return
            st, et = self.cg.pop(0)
            for j in range(8):
                A(f"v_fmamk_f32 v{32+j}, v{24+et}, {fl(32*st + 16*(j>>2) + (j&3))}, v{(27 if st < 4 else 20)+et}")
            for j in range(8):
                A(f"v_cos_f32 v{40+j}, v{32+j}\nv_sin_f32 v{48+j}, v{32+j}")
            A("s_nop 0")
            for j in range(4):
                A(f"v_cvt_pk_bf16_f32 v{self.cfrag(st,et,0)+j}, v{40+2*j}, v{41+2*j}\nv_cvt_pk_bf16_f32 v{self.cfrag(st,et,1)+j}, v{48+2*j}, v{49+2*j}")

    def wo_issue(self, lo, hi):
        A = self.A
        if lo >= hi: return
        A(f"v_lshrrev_b32 v9, 3, v2\nv_bfe_u32 v10, v2, 4, 1\nv_lshlrev_b32 v10, 2, v10\nv_and_b32 v11, 7, v2\nv_xor_b32 v10, v10, v11\nv_mul_u32_u24 v9, 1280, v9\nv_lshl_add_u32 v9, v10, 4, v9")
        A(f"s_mul_i32 s{T0}, s{sGW}, {8*1280}\ns_lshl_b32 s{T0+1}, s{sC}, 7\ns_add_u32 s{T0}, s{T0}, s{T0+1}\ns_lshl_b32 s{T0+1}, s{sGW}, 10")
        for i in range(lo, hi):
            A(f"s_add_u32 m0, s{T0+1}, {L_WO + 4096*i}\ns_add_u32 s{T0+2}, s{T0}, {32*1280*i}\nbuffer_load_dwordx4 v9, {s(RO,4)}, s{T0+2} offen lds")

    def l_after_b1(self):
        A = self.A
        A("L_LPOST:")
        A(f"s_mov_b32 s{sRET}, 0\ns_cmp_ge_u32 s{sC}, 10\ns_cbranch_scc1 L_CG")
        self.wo_issue(0, self.opt.get('wo_early', 20))
        self.ts(4)
        A("s_branch L_ATT\nL_CG:")
        self.cg = [(st, et) for st in range(5) for et in range(3)]
        self.cgn = self.opt.get('cg', (5, 5, 5))
        self.constgen_setup()
        self.constgen(self.cgn[0])
        A(f"s_cmp_eq_u32 s{sRET}, 1\ns_cbranch_scc1 L_A2")
        self.ts(4)
        A("s_branch L_ATT")
        if self.cgn[1]:
            A("L_CG2:")
            self.constgen_setup(); self.constgen(self.cgn[1])
            A("s_branch L_CG2R")

    def b1_loader(self):
        A = self.A
        A(f"s_lshl_b32 s{T0}, s{sJ}, 7\ns_lshl_b32 s{T0+1}, s{sGW}, 5\ns_add_u32 s{T0}, s{T0}, s{T0+1}")
        A(f"v_add_u32 v5, s{T0}, v3\nv_mul_u32_u24 v5, 1280, v5\nv_lshrrev_b32 v6, 1, v3\nv_xor_b32 v7, v6, v4\nv_lshl_add_u32 v10, v7, 4, v5")
        A(f"v_xor_b32 v7, 4, v7\nv_lshl_add_u32 v11, v7, 4, v5\nv_add_u32 v11, {8*1280}, v11\nv_add_u32 v12, {16*1280}, v10\nv_add_u32 v13, {16*1280}, v11")
        A(f"s_mul_i32 s{T0}, s{sC}, 52\ns_lshr_b32 s{T0}, s{T0}, 8\ns_mul_i32 s{T0}, s{T0}, 640\ns_lshl_b32 s{T0+1}, s{sC}, 7\ns_add_u32 s{T0}, s{T0}, s{T0+1}")
        A(f"s_mul_i32 s{T0+1}, s{sGW}, {16*3840}\ns_add_u32 s{T0}, s{T0}, s{T0+1}")
        A(f"v_and_b32 v6, 1, v6\nv_lshlrev_b32 v6, 2, v6\nv_xor_b32 v6, v6, v4\nv_mul_u32_u24 v5, 3840, v3\nv_lshl_add_u32 v5, v6, 4, v5")
        A(f"v_add_u32 v14, s{T0}, v5\nv_add_u32 v15, {8*3840}, v14")
        rj, rc, rx = self.opt.get('rot', (0, 1, 1))
        A(f"s_mul_i32 s{sK0}, s{sJ}, {rj}\ns_mul_i32 s{T0}, s{sC}, {rc}\ns_add_u32 s{sK0}, s{sK0}, s{T0}\ns_mul_i32 s{T0}, s{sX}, {rx}\ns_add_u32 s{sK0}, s{sK0}, s{T0}")
        A(f"s_mul_i32 s{T0}, s{sK0}, 6554\ns_lshr_b32 s{T0}, s{T0}, 16\ns_mul_i32 s{T0}, s{T0}, 10\ns_sub_u32 s{sK0}, s{sK0}, s{T0}")
        A(f"s_lshl_b32 s38, s{sGW}, 12\ns_lshl_b32 s39, s{sGW}, 11")
        def nextk():
            A(f"s_lshl_b32 s{T0}, s{sK0}, 7\ns_mul_i32 s{T0+1}, s{sK0}, {64*3840}\ns_add_u32 s{sK0}, s{sK0}, 1\ns_cmp_eq_u32 s{sK0}, 10\ns_cselect_b32 s{sK0}, 0, s{sK0}")
        M, loc, groups = self.b1_plan()
        vm = Sb(A, "vmcnt", 63)
        def wpair(tag, base):
            for i in range(2):
                vm.op(tag, f"s_add_u32 m0, s39, {base + 1024*i}\ns_nop 0\nbuffer_load_dwordx4 v{14+i}, {s(RW,4)}, s{T0+1} offen lds")
        def stage(n):
            nextk()
            b = L_SLOT[n % 4]
            wpair(("S", n), b + 16 * K)
            for i in range(4):
                vm.op(("S", n), f"s_add_u32 m0, s38, {b + 1024*i}\ns_nop 0\nbuffer_load_dwordx4 v{10+i}, {s(RX,4)}, s{T0} offen lds")
            if n < M:
                A(f"s_add_u32 s{T0+1}, s{T0+1}, 640"); wpair(("S", n), loc[n])
            if n == 9:
                A(f"s_add_u32 s{sK0}, s{sK0}, {M}\ns_sub_u32 s{T0}, s{sK0}, 10\ns_cmp_ge_u32 s{sK0}, 10\ns_cselect_b32 s{sK0}, s{T0}, s{sK0}")
        late = list(range(M, 10))
        def chunks(cnt):
            for _ in range(cnt):
                if late:
                    n = late.pop(0)
                    nextk(); A(f"s_add_u32 s{T0+1}, s{T0+1}, 640"); wpair(("C", n), loc[n])
        pre = self.opt.get('pre', 2)
        for n in range(pre): stage(n)
        self.ts(1)
        nxt = pre
        tail = self.opt.get('tail', {6: 0, 7: 3, 8: 3, 9: 2})
        for n in range(10):
            vm.need(("S", n)); self.ts2(22 + n); A("s_barrier")
            if n == 0: self.ts(2)
            while nxt <= min(9, n + 3):
                stage(nxt); nxt += 1
            chunks(tail.get(n, 0))
        self.ts(3)
        for gi, g in enumerate(groups):
            assert all(c not in late for c in g)
            vm.need(*[("C", c) for c in g]); A("s_barrier")
            chunks(tail.get(10 + gi, 0))
            if gi == 0:
                assert not late
                self.get_nonce(tmp=10)
                A(f"s_mov_b32 s{sRET}, 2\ns_branch L_SET\nL_SETR2:")
        assert not late
        A("s_branch L_LPOST")

    def b1_plan(self):
        M = self.opt.get('M', 2)
        spots = [8 * K * i for i in range(10)]
        loc = {n: spots[n] for n in range(M)}
        for i, n in enumerate(range(M, 10)): loc[n] = spots[i]
        assert max(loc.values()) < 72 * K
        late = list(range(M, 10)); groups = []
        for cnt in self.opt.get('groups', [3, 6]):
            if late[:cnt]: groups.append(late[:cnt])
            late = late[cnt:]
        assert not late
        return M, loc, groups

    def a1_loader(self):
        A = self.A
        A("L_A1L:")
        A(f"s_lshl_b32 s{T0}, s{sGW}, 9\ns_add_u32 s{T0}, s{T0}, s{sJ}\nv_lshl_add_u32 v5, v3, 4, s{T0}\nv_mul_u32_u24 v5, 1280, v5")
        A("v_and_b32 v6, 6, v3\nv_xor_b32 v6, v6, v4\nv_lshl_add_u32 v132, v6, 4, v5")
        for i in range(1, 4): A(f"v_add_u32 v{132+i}, {128*1280*i}, v132")
        A(f"s_lshl_b32 s38, s{sGW}, 12")
        def stage(n):
            for h in range(2):
                A(f"s_mov_b32 s{T0}, {128*n + 640*h}")
                for i in range(4):
                    A(f"s_add_u32 m0, s38, {L_A1X[n] + 16*K*h + 1024*i}\ns_nop 0\nbuffer_load_dwordx4 v{132+i}, {s(RX,4)}, s{T0} offen lds")
        stage(0); stage(1)
        self.ts(1)
        A("s_waitcnt vmcnt(8)"); self.ts2(22); A("s_barrier")
        self.ts(2)
        stage(2); stage(3)
        self.nonce_issue(4)
        self.a1_stage = stage
        A("s_branch L_A1C")

    def c_init(self):
        A = self.A
        A(f"L_C:\ns_mov_b32 s{sHALF}, 1")
        A(f"s_getpc_b64 s[56:57]\nL_pc:\ns_sub_u32 s56, s56, L_pc-{NAME}\ns_subb_u32 s57, s57, 0\ns_mov_b32 s58, L_codeend-{NAME}\ns_mov_b32 s59, 0x20000")
        L = A.label("pf")
        A(f"s_cmp_lg_u32 s{sW}, 1\ns_cbranch_scc1 {L}\nv_lshl_add_u32 v5, v2, 5, s{sLOC}\nv_lshlrev_b32 v5, 7, v5\nbuffer_load_dword v15, v5, s[56:59], 0 offen\n{L}:")
        if self.opt.get('wo_pf', 1):
            L = A.label("wpf")
            A(f"s_cmp_lg_u32 s{sW}, 3\ns_cbranch_scc1 {L}\nv_min_u32 v5, 49, v2\nv_lshlrev_b32 v5, 6, v5\ns_mul_i32 s{T0}, s2, 3200\nbuffer_load_dword v15, v5, {s(RO,4)}, s{T0} offen\n{L}:")
        L = A.label("nw")
        A(f"s_cmp_lg_u32 s{sW}, 2\ns_cbranch_scc1 {L}\ns_cmp_lg_u32 s2, 0\ns_cbranch_scc1 {L}")
        A(f"s_memrealtime s[54:55]\ns_waitcnt lgkmcnt(0)\nv_mov_b32 v6, s54\nv_mov_b32 v7, s55\nv_or_b32 v7, 0x40000000, v7\nv_mov_b32 v5, 0\ns_mov_b64 exec, 1")
        A(f"buffer_store_dwordx2 v[6:7], v5, {s(RD,4)}, 0 offen sc1\ns_mov_b64 exec, -1\n{L}:")
        A(f"v_mov_b32 v8, 0x3f803f80\nv_mov_b32 v10, v8\nv_mov_b32 v11, v8\ns_lshl_b32 s{T0}, s{sJ}, 2\ns_sub_u32 s{T0}, 8, s{T0}")
        for base in (0, 128):
            A(f"v_add_u32 v5, {base}, v0\nv_lshrrev_b32 v6, 5, v5\nv_and_b32 v7, 31, v5")
            A(f"v_mov_b32 v12, 0x00003f80\nv_mov_b32 v13, {hex((BIGH<<16)|0x3f80)}\nv_cmp_gt_i32 vcc, s{T0}, v6\ns_nop 1\nv_cndmask_b32 v12, v12, v13, vcc")
            A(f"v_cmp_eq_u32 vcc, 4, v7\nv_lshlrev_b32 v5, 4, v5\nv_add_u32 v5, {L_ONES}, v5\nv_cndmask_b32 v9, v8, v12, vcc\nds_write_b128 v5, v[8:11]\ns_nop 1")
        A(f"s_mul_i32 s{T0}, s{sGW}, 416\ns_add_u32 s{T0}, s{T0}, {L_MASK}\nv_mov_b32 v13, {hex(BIG)}")
        for base in (0, 40):
            A(f"v_add_u32 v5, {base}, v2\nv_add_u32 v6, s{sGW}, v5\nv_lshrrev_b32 v6, 5, v6\nv_cmp_eq_u32 vcc, 1, v6\nv_lshl_add_u32 v5, v5, 2, s{T0}\ns_nop 0\nv_cndmask_b32 v7, 0, v13, vcc\nds_write_b32 v5, v7")
        A(f"v_and_b32 v5, 31, v2\nv_lshlrev_b32 v5, 2, v5\nv_add_u32 v5, {L_CNT}, v5\nv_mov_b32 v6, 0\nds_write_b32 v5, v6")
        A("v_and_b32 v5, 15, v2\nv_lshrrev_b32 v5, 2, v5\nv_lshrrev_b32 v4, 5, v2\nv_lshl_add_u32 v6, v4, 3, v5\nv_lshlrev_b32 v6, 7, v6")
        A("v_and_b32 v7, 1, v2\nv_lshl_add_u32 v6, v7, 3, v6\nv_bfe_u32 v7, v2, 4, 1\nv_bfe_u32 v10, v2, 1, 1\nv_lshl_add_u32 v7, v7, 1, v10")
        A("v_lshrrev_b32 v5, 1, v5\nv_lshlrev_b32 v5, 2, v5\nv_xor_b32 v7, v7, v5\nv_lshl_add_u32 v8, v7, 4, v6\nv_xor_b32 v9, 64, v8")
        A("v_and_b32 v3, 31, v2")
        A(f"s_cmp_eq_u32 s{sC}, 15\ns_cbranch_scc1 L_A1C")

    def b1_consumer(self):
        A = self.A
        M, loc, groups = self.b1_plan()
        ACC, WF = [64, 96], 32
        def xreg(n):
            return 128 + 16 * ((n - M) if n >= M else (9 - M - n))
        assert M >= 2
        A(f"s_lshl_b32 s{T0}, s{sGW}, 12\ns_add_u32 s{T0}, s{T0}, {56*K}\nv_lshl_add_u32 v5, v3, 7, s{T0}\nv_bfe_u32 v6, v3, 1, 3")
        for st in range(4):
            A(f"v_add_u32 v7, {2*st}, v4\nv_xor_b32 v7, v7, v6\nv_lshl_add_u32 v{10+st}, v7, 4, v5\nv_add_u32 v{22+st}, {48*K}, v{10+st}")
        A(f"v_add_u32 v26, {56*K}, v8\nv_add_u32 v27, {56*K}, v9\nv_add_u32 v28, {104*K}, v8\nv_add_u32 v29, {104*K}, v9")
        A(f"s_lshl_b32 s{T0}, s{sJ}, 7\ns_lshl_b32 s{T0+1}, s{sGW}, 5\ns_add_u32 s{T0}, s{T0}, s{T0+1}\nv_add_u32 v5, s{T0}, v3\nv_lshlrev_b32 v5, 4, v5\nv_lshl_add_u32 v14, v4, 15, v5")
        A(f"s_mul_i32 s{T0}, s{sC}, 52\ns_lshr_b32 s{T0}, s{T0}, 8\ns_mul_i32 s{T0}, s{T0}, 5\ns_add_u32 s{T0}, s{T0}, s{sC}\ns_lshl_b32 s38, s{T0}, 18")
        A(f"s_cmp_lt_u32 s{sC}, 5\ns_cselect_b32 s39, {fl(QSCALE)}, 1.0")
        A(f"s_mul_i32 s{T0}, s{sC}, 52\ns_lshr_b32 s{T0}, s{T0}, 8\ns_mul_i32 s{T0+1}, s{T0}, 5\ns_sub_u32 s{T0+1}, s{sC}, s{T0+1}")
        A(f"v_lshrrev_b32 v5, 4, v2\nv_bfe_u32 v6, v2, 2, 2\nv_and_b32 v7, 3, v2\nv_add_u32 v16, s{sJ}, v5")
        A(f"s_mul_i32 s{T0+2}, s{T0+1}, 3\nv_lshl_add_u32 v17, v16, 4, s{T0+2}\nv_add_u32 v17, v17, v7\nv_lshlrev_b32 v17, 9, v17\nv_lshl_add_u32 v17, v6, 4, v17")
        A(f"s_min_u32 s{T0+1}, s{T0+1}, 1\ns_lshl_b32 s{T0+1}, s{T0+1}, 3\nv_mov_b32 v18, s{T0+1}\nv_cmp_eq_u32 vcc, 0, v7\ns_lshl_b32 s{T0+2}, s{T0}, 7\ns_add_u32 s{T0+2}, s{T0+2}, {WS_FQ}")
        A(f"v_cndmask_b32 v18, 0, v18, vcc\nv_add3_u32 v17, v17, v18, s{T0+2}")
        A(f"s_cmp_eq_u32 s{sJ}, 0\ns_cselect_b32 s{T0+1}, 3, 0\ns_min_u32 s{T0}, s{T0}, 1\ns_lshl_b32 s{T0}, s{T0}, 1\nv_sub_u32 v18, v6, v5")
        A(f"v_cmp_ge_u32 vcc, s{T0+1}, v18\nv_cmp_ge_u32 s[44:45], s{T0}, v6\nv_cmp_ge_u32 s[46:47], 15, v16\ns_and_b64 vcc, vcc, s[44:45]\ns_and_b64 vcc, vcc, s[46:47]")
        A(f"v_mov_b32 v18, 0x7f000000\nv_mov_b32 v20, {C_FA}\nv_mov_b32 v21, 1\nv_cndmask_b32 v31, v18, v17, vcc")
        def last_issue(off): return f"s_mov_b64 exec, 1\nds_add_rtn_u32 v30, v20, v21 offset:{off}\ns_mov_b64 exec, -1"
        def last_flag():
            L = A.label("lf")
            A(f"v_readfirstlane_b32 s{T0}, v30\ns_cmp_lg_u32 s{T0}, 3\ns_cbranch_scc1 {L}")
            self.push(31, 16)
            A(f"{L}:")
        A("s_waitcnt lgkmcnt(0)")
        self.ts(1)
        lg = Sb(A, "lgkmcnt", 15)
        steps = []
        for n in range(10):
            steps += [(0, n, st) for st in range(4)]
            if n < M: steps += [(1, n, st) for st in range(4)]
        na = len(steps)
        for n in range(M, 10): steps += [(1, n, st) for st in range(4)]
        gfirst = {g[0] for g in groups}
        def waddr(a):
            if a < 56 * K: return (8, 9), a
            if a < 104 * K: return (26, 27), a - 56 * K
            return (28, 29), a - 104 * K
        def rd(i, t):
            half, n, st = steps[i]
            if t == 0 and st == 0 and half == 0:
                lg.drain()
                if n == 3: self.nonce_issue()
                if n == 6: self.nonce_finish()
                self.ts2(22 + n)
                A("s_barrier")
                if n == 0: self.ts(2)
                if n == 8: self.get_nonce(tmp=18)
            if t == 0 and st == 0 and i >= na and n in gfirst:
                if i == na: lg.drain()
                A("s_barrier")
            if half == 0:
                b = L_SLOT[n % 4]
                xa, xo = (10 + st, b - 56 * K) if b < 104 * K else (22 + st, b - 104 * K)
                if t == 0: lg.op(i, f"ds_read_b128 {v(xreg(n)+4*st,4)}, v{xa} offset:{xo}")
                base, off = waddr(b + 16 * K)
            else:
                base, off = waddr(loc[n])
            for h in range(2):
                lg.op(i, f"ds_read_b64_tr_b16 {v(WF+8*(i&3)+4*t+2*h,2)}, v{base[t]} offset:{off + st*2048 + h*512}")
        def mf(i, t):
            half, n, st = steps[i]
            if t == 0: lg.need(i)
            d = v(ACC[half] + 16 * t, 16)
            A(f"v_mfma_f32_32x32x16_bf16 {d}, {v(WF+8*(i&3)+4*t,4)}, {v(xreg(n)+4*st,4)}, {'0' if (n == 0 and st == 0) else d}")
        def epi(half):
            out = []
            a = ACC[half]
            for t in range(2):
                for p in range(2):
                    r = a + 16 * t + 8 * p
                    for i in range(8): out.append(lambda r=r, i=i: A(f"v_mul_f32 v{r+i}, s39, v{r+i}"))
                    for i in range(4): out.append(lambda r=r, i=i: A(f"v_cvt_pk_bf16_f32 v{r+i}, v{r+2*i}, v{r+2*i+1}"))
                    out.append(lambda t=t, p=p: A(f"s_add_u32 s{T0+2}, s38, {WS_QKV + (40*half + 4*t + 2*p)*32768}\ns_nop 0"))
                    out.append(lambda r=r: A(f"v_permlane32_swap_b32 v{r}, v{r+2}"))
                    out.append(lambda r=r: A(f"v_permlane32_swap_b32 v{r+1}, v{r+3}"))
                    out.append(lambda r=r: A(f"buffer_store_dwordx4 {v(r,4)}, v14, {s(RS,4)}, s{T0+2} offen sc1"))
            return out
        LA = self.opt.get('LA', 2)
        nt = len(steps)
        hold = self.opt.get('hold', 1)
        rp = 0
        def upto(lim):
            nonlocal rp
            while rp < min(lim, 2 * nt):
                rd(rp >> 1, rp & 1); rp += 1
        upto(2 * LA)
        fa = []
        per = self.opt.get('epi_per', 3)
        for i in range(nt):
            if i == na:
                self.ts(3)
                fa = epi(0)
                if hold:
                    A("s_nop 11")
                    for _ in range(self.opt.get('epi_first', 16)): fa.pop(0)()
                    upto(2 * (na + LA))
                else:
                    fa = [lambda: None] * (4 * per) + fa
                if self.opt.get('prio', 1): A("s_setprio 2")
            for t in range(2):
                mf(i, t)
                lim = 2 * (i + LA) + t + 1
                if hold and i < na: lim = min(lim, 2 * na)
                upto(lim)
                for _ in range(per):
                    if fa:
                        fa.pop(0)()
                        if not fa: self.ts(4)
            if i == nt - self.opt.get('flag_a', 12):
                assert not fa
                A("s_waitcnt vmcnt(0)")
                lg.op("fa", last_issue(0))
            if i == nt - self.opt.get('flag_a', 12) + 2:
                lg.need("fa"); last_flag()
                self.ts(5)
        self.lds_arrive(C_B1, tmp=22)
        A("s_nop 6")
        self.ts(6)
        for f in epi(1): f()
        A(f"s_setprio 0\nv_add_u32 v31, {128*K}, v31\ns_mov_b32 s{sRET}, 3\ns_branch L_SET\nL_SETR3:\ns_waitcnt vmcnt(0)\n{last_issue(4)}\ns_waitcnt lgkmcnt(0)")
        last_flag()
        self.ts(7)
        A("s_branch L_ATT")

    def a1_consumer(self):
        A = self.A
        A("L_A1C:")
        CF, ACC, XF, PK = 192, [64, 128], 32, 224
        A(f"v_bfe_u32 v5, v2, 1, 3\ns_lshl_b32 s{T0}, s{sGW}, 4\nv_add_u32 v5, s{T0}, v5\nv_lshrrev_b32 v6, 4, v2\nv_lshl_add_u32 v7, v6, 6, s{sJ}\nv_cvt_f32_u32 v7, v7")
        A(f"v_and_b32 v10, 1, v2\nv_cvt_f32_u32 v10, v10\nv_mul_f32 v10, {fl(0.25)}, v10")
        for mt in range(2):
            A(f"v_add_u32 v11, {8*mt}, v5\nv_cvt_f32_u32 v11, v11\nv_mul_f32 v12, {fl(1/2048)}, v11\nv_fma_f32 v12, v12, v7, v10\nv_mul_f32 v11, {fl(1/128)}, v11")
            for ks in range(4):
                for j in range(8): A(f"v_fmamk_f32 v{32+j}, v11, {fl(32*ks + 16*(j>>2) + (j&3))}, v12")
                for j in range(8): A(f"v_cos_f32 v{40+j}, v{32+j}")
                A("s_nop 0")
                for j in range(4): A(f"v_cvt_pk_bf16_f32 v{CF+16*mt+4*ks+j}, v{40+2*j}, v{41+2*j}")
        L = A.label("t0")
        A(f"s_cmp_lg_u32 s{sGW}, 0\ns_cbranch_scc1 {L}\ns_mov_b32 exec_lo, 0x00020002\ns_mov_b32 exec_hi, 0x00020002")
        for i in range(16): A(f"v_mov_b32 v{CF+i}, 0xbf803f80")
        A(f"s_mov_b64 exec, -1\n{L}:")
        A(f"v_lshrrev_b32 v5, 2, v2\nv_and_b32 v7, 6, v5\nv_bfe_u32 v10, v2, 1, 1\nv_xor_b32 v7, v7, v10\nv_and_b32 v10, 1, v2\nv_lshlrev_b32 v10, 3, v10\nv_lshl_add_u32 v10, v5, 7, v10")
        for tau in range(4): A(f"v_xor_b32 v11, {2*tau}, v7\nv_lshl_add_u32 v{24+tau}, v11, 4, v10")
        A(f"v_lshl_add_u32 v5, v6, 1, s{T0}\nv_mul_u32_u24 v5, {ZP}, v5\nv_and_b32 v7, 15, v2\nv_lshl_add_u32 v5, v7, 4, v5\ns_lshl_b32 s{T0+1}, s{sJ}, 8\nv_add_u32 v12, s{T0+1}, v5")
        Ll = A.label("a1l"); Lgo = A.label("a1go")
        A(f"s_cmp_eq_u32 s{sHALF}, 0\ns_cbranch_scc1 {Ll}")
        A(f"s_mov_b32 s47, 0\ns_mov_b32 s44, {L_A1X[0]}\ns_mov_b32 s46, {WS_Z}\ns_waitcnt lgkmcnt(0)")
        self.ts(1); self.ts2(22)
        A(f"s_barrier")
        self.ts(2)
        A(f"s_branch {Lgo}\n{Ll}:")
        A(f"s_mov_b32 s47, 1\ns_mov_b32 s44, {L_A1X[1]}\ns_mov_b32 s46, {WS_Z + 4096}")
        self.lds_wait(C_S0, 4, tmp=28)
        self.a1_stage(4)
        A("s_waitcnt vmcnt(8)")
        self.lds_arrive(C_S4, tmp=28)
        self.ts2(23)
        self.lds_wait(C_S4, 4, tmp=28)
        A(f"{Lgo}:")
        def acc(st, mt, h, tau): return ACC[st] + 32 * mt + 16 * h + 4 * tau
        def mm(st):
            lg = Sb(A, "lgkmcnt", 15)
            for tau in range(4): A(f"v_add_u32 v{20+tau}, s{44+st}, v{24+tau}")
            fr = [(ks, h, tau) for ks in range(4) for h in range(2) for tau in range(4)]
            def rd(q, hf):
                if q >= 32: return
                ks, h, tau = fr[q]
                lg.op(q, f"ds_read_b64_tr_b16 {v(XF+4*(q&7)+2*hf,2)}, v{20+tau} offset:{h*16*K + ks*4096 + hf*2048}")
            LA = 6
            for q in range(LA): rd(q, 0); rd(q, 1)
            for q in range(32):
                ks, h, tau = fr[q]
                if q % 2 == 0: lg.need(q, q + 1)
                for mt in range(2):
                    d = v(acc(st, mt, h, tau), 4)
                    A(f"v_mfma_f32_16x16x32_bf16 {d}, {v(CF+16*mt+4*ks,4)}, {v(XF+4*(q&7),4)}, {'0' if ks == 0 else d}")
                    rd(q + LA, mt)
        def epi(st):
            for mt in range(2):
                pk = PK + 16 * mt
                for tau in range(4):
                    a0, a1 = acc(st, mt, 0, tau), acc(st, mt, 1, tau)
                    for r in range(4):
                        A(f"v_add_f32 v{28+r}, v{a0+r}, v{a1+r}\nv_sub_f32 v{a1+r}, v{a0+r}, v{a1+r}")
                    for rp in range(2):
                        A(f"v_cvt_pk_bf16_f32 v{pk+8*rp+tau}, v{28+2*rp}, v{29+2*rp}\nv_cvt_pk_bf16_f32 v{pk+8*rp+4+tau}, v{a1+2*rp}, v{a1+2*rp+1}")
                for rp in range(2):
                    for pi in range(2):
                        A(f"s_add_u32 s{T0}, s46, {(8*mt+rp)*ZP + pi*20480 + st*4096}\nbuffer_store_dwordx4 {v(pk+8*rp+4*pi,4)}, v12, {s(RS,4)}, s{T0} offen sc1")
        L1 = A.label("a1"); L2 = A.label("a1"); L3 = A.label("a1"); L4 = A.label("a1"); L5 = A.label("a1")
        A("L_A1M:")
        mm(0)
        A(f"s_cmp_eq_u32 s47, 0\ns_cbranch_scc0 {L1}")
        self.ts2(23)
        self.lds_arrive(C_S0, tmp=28)
        A(f"{L1}:\ns_cmp_eq_u32 s47, 1\ns_cbranch_scc0 {L2}")
        self.nonce_finish(4)
        A("s_waitcnt vmcnt(0)")
        self.lds_arrive(C_S4, tmp=28)
        A(f"{L2}:\ns_nop 4")
        epi(0)
        if self.opt.get('fine'):
            for st in range(5):
                Lx = A.label("x"); A(f"s_cmp_eq_u32 s47, {st}\ns_cbranch_scc0 {Lx}"); self.ts(24 + st); A(f"{Lx}:")
        A(f"s_cmp_ge_u32 s47, 3\ns_cbranch_scc1 {L3}\ns_add_u32 s46, s46, 8192")
        A(f"s_cmp_eq_u32 s47, 0\ns_cbranch_scc0 {L5}")
        self.lds_wait(C_S4, 4, tmp=28)
        A(f"s_mov_b32 s47, 2\ns_mov_b32 s44, {L_A1X[2]}\ns_branch L_A1M\n{L5}:")
        L6 = A.label("a1")
        A(f"s_cmp_eq_u32 s47, 1\ns_cbranch_scc0 {L6}\ns_mov_b32 s47, 3\ns_mov_b32 s44, {L_A1X[3]}\ns_branch L_A1M\n{L6}:")
        self.lds_wait(C_S4, 8, tmp=28)
        A(f"s_mov_b32 s47, 4\ns_mov_b32 s44, {L_A1X[4]}\ns_branch L_A1M\n{L3}:")
        self.ts(3)
        self.lds_wait(C_S4, 8, tmp=28)
        self.get_nonce(tmp=18)
        A(f"s_cmp_eq_u32 s{sHALF}, 1\ns_cbranch_scc1 {L4}")
        self.lds_arrive(C_B1, tmp=28)
        A(f"{L4}:\ns_mov_b32 s{sRET}, 4\ns_branch L_SET\nL_SETR4:")
        A(f"s_lshl_b32 s54, s{sHALF}, 2\ns_add_u32 s54, s54, s{sGW}\ns_lshl_b32 s54, s54, 3\ns_mul_i32 s55, s{sJ}, 4224\ns_add_u32 s54, s54, s55\ns_add_u32 s54, s54, {WS_FZ}\ns_waitcnt vmcnt(0)")
        self.flag("s54", tmp=21)
        self.ts(7)
        A("s_branch L_ATT")

    def attention(self):
        A = self.A
        sH, sF0, sHP, sHO, sKV, sTOK = 44, 45, 46, 47, 48, 49
        A("L_SET:")
        A(f"s_mul_i32 s{T0}, s{sC}, 5\ns_lshr_b32 s{T0}, s{T0}, 1\ns_and_b32 s{T0+1}, s{sC}, 1\ns_lshl_b32 s{sHO}, s{T0+1}, 3")
        A(f"s_mul_i32 s{T0+2}, s{sHALF}, 40\ns_add_u32 s{T0+2}, s{T0+2}, s{T0}\ns_add_u32 s{sF0}, s{T0+2}, s{T0+1}")
        A(f"s_add_u32 s{sHP}, s{T0+2}, 2\ns_cmp_eq_u32 s{T0+1}, 1\ns_cselect_b32 s{sHP}, s{T0+2}, s{sHP}")
        A(f"s_lshl_b32 s{sH}, s{sHALF}, 4\ns_add_u32 s{sH}, s{sH}, s{sC}\ns_mul_i32 s{sKV}, s{sHALF}, {L_KV[1]}")
        A(f"s_lshl_b32 s{sTOK}, s{sJ}, 7\ns_lshl_b32 s{T0+3}, s{sGW}, 5\ns_add_u32 s{sTOK}, s{sTOK}, s{T0+3}")
        A("v_and_b32 v18, 31, v2\nv_lshrrev_b32 v19, 5, v2")
        A(f"s_lshl_b32 s50, s{sGW}, 9\ns_add_u32 s51, s50, s{sKV}")
        A(f"v_lshl_add_u32 v9, v18, 4, s51\nv_mul_u32_u24 v10, {KPL[1]}, v19\nv_add_u32 v3, v9, v10")
        A(f"s_add_u32 s52, s{sHO}, {KPL[2]}\nv_add_u32 v9, s52, v9\ns_add_u32 s52, s50, {L_ONES+64}\nv_mov_b32 v10, s52\nv_cmp_eq_u32 vcc, 1, v19\ns_nop 1\nv_cndmask_b32 v4, v9, v10, vcc")
        A(f"v_bfe_u32 v9, v2, 2, 2\nv_lshl_add_u32 v9, v19, 2, v9\nv_lshl_add_u32 v9, v9, 4, s51")
        A(f"v_bfe_u32 v10, v2, 1, 1\nv_mul_u32_u24 v10, {VPL[1]-VPL[0]}, v10\nv_and_b32 v11, 1, v2\nv_lshl_add_u32 v10, v11, 3, v10\nv_add_u32 v10, {VPL[0]}, v10\nv_add_u32 v10, v9, v10")
        A(f"s_add_u32 s52, s{sHO}, {VPL[2]}\nv_add_u32 v9, s52, v9\nv_mov_b32 v11, {L_ONES}\nv_and_b32 v5, 3, v2\nv_cmp_eq_u32 vcc, 0, v5\ns_nop 1\nv_cndmask_b32 v9, v11, v9, vcc")
        A("v_and_b32 v5, 16, v2\nv_cmp_eq_u32 vcc, 0, v5\ns_nop 1\nv_cndmask_b32 v5, v9, v10, vcc")
        A(f"v_lshlrev_b32 v9, 2, v19\nv_sub_u32 v9, v9, v18\nv_add_u32 v9, 31, v9\nv_and_b32 v10, 3, v9\nv_mul_u32_u24 v10, 412, v10\nv_lshl_add_u32 v9, v9, 2, v10\nv_add_u32 v6, {L_MASK}, v9")
        A(f"v_add_u32 v9, s{sTOK}, v18\nv_lshlrev_b32 v129, 4, v9\nv_lshl_add_u32 v128, v19, 15, v129\nv_lshlrev_b32 v130, 4, v2")
        A(f"s_mul_i32 s52, s{sHALF}, 12\ns_add_u32 s52, s52, {C_QA}")
        A(f"s_add_u32 s54, s{sF0}, s{sGW}\ns_cmp_ge_u32 s{sGW}, 2\ns_cselect_b32 s54, s{sHP}, s54\ns_add_u32 s54, s54, 80\ns_lshl_b32 s54, s54, 15")
        for b in range(3):
            A(f"s_sub_u32 s55, s{sJ}, {2-b}\ns_max_i32 s55, s55, 0\ns_lshl_b32 s55, s55, 11\ns_add_u32 s{8+b}, s54, s55")
        A(f"s_mul_i32 s11, s{sGW}, 6144\ns_add_u32 s11, s11, s{sKV}\ns_lshl_b32 s12, s{sGW}, 6\ns_add_u32 s12, s12, s11\ns_add_u32 s12, s12, {VPL[0]}")
        A(f"s_lshl_b32 s61, s{sF0}, 15\ns_lshl_b32 s62, s{sHP}, 15\ns_add_u32 s62, s62, s{sHO}\nv_add_u32 v131, {80*32768}, v130")
        A(f"s_lshr_b32 s13, 0x1248, s{sC}\ns_and_b32 s13, s13, 1\ns_lshl_b32 s14, s{sHALF}, 8\ns_add_u32 s14, s14, s{sRID}\ns_lshl_b32 s14, s14, 9\ns_add_u32 s14, s14, {WS_FQ}")
        A(f"s_lshl_b32 s28, s{sH}, 16\ns_add_u32 s28, s28, {WS_OF}\ns_lshr_b32 s29, s{sH}, 1\ns_lshl_b32 s29, s29, 15\ns_add_u32 s29, s29, s{sHO}\ns_add_u32 s29, s29, {WS_OT}")
        A(f"s_lshl_b32 s53, s{sHALF}, 4\ns_add_u32 s53, s53, s{sJ}\ns_lshl_b32 s53, s53, 6\ns_add_u32 s53, s53, s{sGW}\ns_lshl_b32 s53, s53, 2\ns_lshr_b32 s54, s{sC}, 2\ns_add_u32 s53, s53, s54")
        A(f"s_lshl_b32 s53, s53, 4\ns_and_b32 s54, s{sC}, 3\ns_add_u32 s53, s53, s54\ns_lshl_b32 s53, s53, 3\ns_add_u32 s53, s53, {WS_FO}\nv_lshl_add_u32 v132, v2, 11, s53")
        A(f"s_cmp_eq_u32 s{sRET}, 2\ns_cbranch_scc1 L_SETR2\ns_cmp_eq_u32 s{sRET}, 3\ns_cbranch_scc1 L_SETR3\ns_branch L_SETR4")
        A("L_ATT:")
        Lw = A.label("aw"); Lg = A.label("ag")
        A(f"s_cmp_lg_u32 s{sGW}, 3\ns_cbranch_scc1 {Lw}")
        w1 = [56, 64, 68, 72, 80, 84, 88]
        if self.opt.get('b1first'): self.lds_wait(C_B1, 4)
        if self.opt.get('qpoll', 's') == 's':
            self.spoll([(4, 56, "s14", 0), (16, 64, "s14", 128), (16, 80, "s14", 256)], w1, ("s13", [d + 2 for d in w1]))
        else:
            A("v_min_u32 v9, 13, v2\nv_add_u32 v10, 4, v9\nv_mul_u32_u24 v11, 43, v10\nv_lshrrev_b32 v11, 8, v11\nv_mul_u32_u24 v12, 6, v11\nv_sub_u32 v10, v10, v12\nv_lshrrev_b32 v10, 1, v10")
            A("v_min_u32 v12, 1, v11\nv_mul_u32_u24 v10, v10, v12\nv_and_b32 v9, s13, v9\nv_lshl_add_u32 v9, v10, 1, v9\nv_lshl_add_u32 v9, v11, 4, v9\nv_lshl_add_u32 v12, v9, 3, s14")
            self.poll(12, tmp=10)
        if not self.opt.get('b1first'): self.lds_wait(C_B1, 4)
        self.lds_arrive("s52")
        self.ts(8)
        qld = f"buffer_load_dwordx4 v[12:15], v128, {s(RS,4)}, s61 offen sc1\nbuffer_load_dwordx2 v[16:17], v129, {s(RS,4)}, s62 offen sc1"
        A(f"{qld}\ns_branch {Lg}\n{Lw}:")
        self.lds_wait("s52", 1)
        self.ts(8)
        for sec in range(2):
            for b in (2, 1, 0):
                A(f"s_add_u32 m0, s{11+sec}, {2048*b}\ns_nop 0")
                for o in (0, 1024): A(f"buffer_load_dwordx4 v{130+sec}, {s(RS,4)}, s{8+b} offen offset:{o} sc1 lds")
            if sec == 0: A(qld)
        A(f"{Lg}:")
        Lq = A.label("cq")
        A(f"s_cmp_eq_u32 s{sHALF}, 1\ns_cbranch_scc1 {Lq}")
        if self.opt.get('prio', 1): A("s_setprio 2")
        if self.cgn[1]: A(f"s_cmp_ge_u32 s{sC}, 10\ns_cbranch_scc1 L_CG2\nL_CG2R:")
        Lq2 = A.label("cq")
        A(f"{Lq}:\ns_add_u32 s52, s52, 4\ns_waitcnt vmcnt(6)\ns_cmp_lg_u32 s{sGW}, 3\ns_cbranch_scc1 {Lq2}\ns_waitcnt vmcnt(0)\n{Lq2}:")
        self.lds_arrive("s52")
        A(f"v_cmp_eq_u32 vcc, 1, v19\nv_mov_b32 v7, {hex(BIG)}\nv_mov_b32 v8, 0x3f800000\nv_cndmask_b32 v16, v16, 0, vcc\nv_cndmask_b32 v17, v17, v8, vcc")
        self.lds_wait("s52", 4)
        self.ts(9)
        KF = [20, 26]; VF = [32, 40]; S = [48, 64]; MK = 80; P = [96, 104]; O = 112
        def rdk(t):
            A(f"ds_read_b128 {v(KF[t&1],4)}, v3 offset:{t*512}\nds_read_b64 {v(KF[t&1]+4,2)}, v4 offset:{t*512}")
        def rdm(far):
            for q4 in range(4): A(f"ds_read_b128 {v(MK+4*q4,4)}, v6 offset:{32*q4 + (128 if far else 0)}")
        def rdv(t):
            for a in range(2):
                for h in range(2):
                    A(f"ds_read_b64_tr_b16 {v(VF[t&1]+4*a+2*h,2)}, v5 offset:{t*512+a*256+h*128}")
        def qka(t):
            c = v(MK, 16) if t in (0, 8) else "0"
            A(f"v_mfma_f32_32x32x16_bf16 {v(S[t&1],16)}, {v(KF[t&1],4)}, v[12:15], {c}")
        def qkb(t):
            A(f"v_mfma_f32_32x32x8bf16_1k {v(S[t&1],16)}, {v(KF[t&1]+4,2)}, v[16:17], {v(S[t&1],16)}")
        def mx(t):
            for r in range(0, 16, 2): A(f"v_max3_f32 v7, v7, v{S[t&1]+r}, v{S[t&1]+r+1}")
        sMODE, sOFF = 63, 97
        def pass1_full():
            rdm(True); rdk(0); rdk(1)
            for t in range(9):
                A(f"s_waitcnt lgkmcnt({0 if t == 8 else 6 if t == 3 else 2})")
                qka(t); qkb(t)
                if t + 2 < 9: rdk(t + 2)
                if t == 2: rdm(False)
                if t == 0: A("s_nop 7")
                if t >= 7: A("s_nop 1")
                if t > 0: mx(t - 1)
            rdk(1)
            A("s_nop 3")
            mx(8)
        self.pass1_full = pass1_full
        if self.opt.get('onepass', 1):
            A(f"s_mov_b32 s{sMODE}, 0\ns_mov_b32 s{sOFF}, {fl(-40.0)}")
            rdk(7); rdm(False); rdk(8)
            A("s_waitcnt lgkmcnt(6)"); qka(7); qkb(7)
            A("s_waitcnt lgkmcnt(0)"); qka(8); qkb(8)
            rdk(1)
            A(f"s_add_u32 s52, s52, 4\nv_mov_b32 v8, {hex(BIG)}\ns_nop 4")
            for r in range(0, 16, 2): A(f"v_max3_f32 v{7+((r>>1)&1)}, v{7+((r>>1)&1)}, v{S[1]+r}, v{S[1]+r+1}")
            for r in range(0, 16, 2): A(f"v_max3_f32 v{7+((r>>1)&1)}, v{7+((r>>1)&1)}, v{S[0]+r}, v{S[0]+r+1}")
            A("v_max_f32 v7, v7, v8")
        else:
            A(f"s_mov_b32 s{sMODE}, 1\ns_mov_b32 s{sOFF}, 0")
            pass1_full()
            A("s_add_u32 s52, s52, 4")
        A("L_P2:")
        rdm(True); rdk(0)
        A("v_mov_b32 v8, v7\ns_nop 1\nv_permlane32_swap_b32 v7, v8\ns_nop 1\nv_max_f32 v7, v7, v8")
        A(f"v_sub_f32 v9, s{sOFF}, v7\nv_and_b32 v10, 0xffff0000, v9\nv_sub_f32 v9, v9, v10\nv_and_b32 v11, 0xffff0000, v9\nv_sub_f32 v9, v9, v11")
        A("v_lshrrev_b32 v10, 16, v10\nv_or_b32 v10, v10, v11\nv_lshrrev_b32 v9, 16, v9\nv_or_b32 v9, 0x3f800000, v9")
        A("v_cmp_eq_u32 vcc, 1, v19\ns_nop 1\nv_cndmask_b32 v16, v16, v10, vcc\nv_cndmask_b32 v17, v17, v9, vcc")
        A("s_waitcnt lgkmcnt(0)\ns_nop 0")
        self.ts(10)
        qka(0); qkb(0)
        A("s_waitcnt vmcnt(0)")
        self.lds_arrive("s52")
        self.lds_wait("s52", 4)
        self.ts2(31)
        rdv(0); rdk(2)
        def ex(t, r0, n):
            for r in range(r0, r0 + n): A(f"v_exp_f32 v{S[t&1]+r}, v{S[t&1]+r}")
        def cv(t, a):
            for r in range(4): A(f"v_cvt_pk_bf16_f32 v{P[a]+r}, v{S[t&1]+8*a+2*r}, v{S[t&1]+8*a+2*r+1}")
        def pv(t, a):
            A(f"v_mfma_f32_32x32x16_bf16 {v(O,16)}, {v(VF[t&1]+4*a,4)}, {v(P[a],4)}, {'0' if (t == 0 and a == 0) else v(O,16)}")
        for t in range(9):
            if t < 8:
                if t > 0: A(f"s_waitcnt lgkmcnt({2 if t < 7 else 0})")
                qka(t + 1)
            else:
                A("s_waitcnt lgkmcnt(0)")
            ex(t, 0, 3)
            if t > 0: pv(t - 1, 1)
            ex(t, 3, 3)
            if t < 8: qkb(t + 1)
            if t == 1: rdm(False)
            if t < 8: rdv(t + 1)
            if t + 3 < 9: rdk(t + 3)
            ex(t, 6, 3)
            cv(t, 0)
            ex(t, 9, 3)
            if t == 0: A("s_waitcnt lgkmcnt(8)")
            pv(t, 0)
            ex(t, 12, 4)
            A("s_nop 0")
            cv(t, 1)
        A("s_nop 1")
        pv(8, 1)
        A("s_nop 11")
        A(f"v_mov_b32 v9, v{O+8}\nv_mov_b32 v10, v{O+8}")
        if self.opt.get('onepass', 1):
            A(f"v_max3_f32 v11, abs(v{O}), abs(v{O+1}), abs(v{O+2})")
            for r in range(3, 11, 2): A(f"v_max3_f32 v11, v11, abs(v{O+r}), abs(v{O+r+1})")
            A(f"v_max_f32_e64 v11, v11, abs(v{O+11})\nv_cmp_ngt_f32 vcc, {fl(2.0**80)}, v11\ns_cmp_eq_u32 s{sMODE}, 1\ns_cbranch_scc1 L_P3\ns_cmp_eq_u64 vcc, 0\ns_cbranch_scc0 L_EXACT\nL_P3:")
        else: A("s_nop 1")
        A("v_permlane32_swap_b32 v9, v10\ns_nop 1\nv_rcp_f32 v10, v10\ns_nop 0")
        for r in range(12): A(f"v_mul_f32 v{O+r}, v10, v{O+r}")
        for r in range(6): A(f"v_cvt_pk_bf16_f32 v{96+r}, v{O+2*r}, v{O+2*r+1}")
        A(f"buffer_store_dwordx4 v[96:99], v128, {s(RS,4)}, s28 offen sc1\ns_mov_b32 exec_hi, 0")
        A(f"buffer_store_dwordx2 v[100:101], v129, {s(RS,4)}, s29 offen sc1")
        self.ts(11)
        A(f"s_setprio 0\ns_mov_b64 exec, 0x3ff\nv_mov_b32 v10, s{sN}\nv_mov_b32 v11, s{sN+1}\ns_waitcnt vmcnt(0)")
        A(f"buffer_store_dwordx2 v[10:11], v132, {s(RS,4)}, 0 offen sc1\ns_mov_b64 exec, -1")
        self.ts(12)
        Lz = A.label("rl")
        A(f"s_cmp_eq_u32 s{sHALF}, 0\ns_cbranch_scc1 {Lz}\ns_cmp_lt_u32 s{sC}, 10\ns_cbranch_scc1 L_FIN\ns_branch L_A2C\n{Lz}:")
        A(f"s_cmp_lt_u32 s{sC}, 10\ns_cbranch_scc1 L_OP")

    def a2_tasks(self):
        A = self.A
        A(f"s_lshl_b32 s45, s{sX}, 1\ns_add_u32 s45, s45, s{sLOC}\ns_and_b32 s45, s45, 3\ns_sub_u32 s{T0}, s{sLOC}, 20\ns_lshr_b32 s{T0}, s{T0}, 2\ns_mul_i32 s{T0+1}, s{T0}, 3\ns_lshl_b32 s44, s{sX}, 3\ns_add_u32 s44, s44, s{T0+1}")
        A(f"s_cmp_lt_u32 s{sX}, 2\ns_cselect_b32 s49, 3, 2\ns_cmp_eq_u32 s{sC}, 15\ns_cselect_b32 s49, 2, s49\ns_cmp_lt_u32 s{T0}, 2\ns_cselect_b32 s49, 3, s49\ns_cselect_b32 s63, 0, 1")
        A("s_mov_b32 s47, 0\ns_mov_b32 s61, 0")

    def a2_next(self, loop):
        A = self.A
        A("s_add_u32 s61, s61, 1\ns_add_u32 s44, s44, 1\ns_cmp_eq_u32 s61, 2\ns_cselect_b32 s47, s63, 0\ns_cmp_eq_u32 s47, 1\ns_cselect_b32 s44, 0, s44")
        A(f"s_cmp_lt_u32 s61, s49\ns_cbranch_scc1 {loop}")

    def a2(self):
        A = self.A
        sU, sPASS, sGQ, sNT, sI, sGH = 44, 47, 48, 49, 61, 39
        F, U, D, AQ, AP, ZF = 16, [24, 88], [32, 48], 64, 76, 96
        self.a2_tasks()
        A(f"s_and_b32 s{T0}, s{sGW}, 1\ns_mul_i32 s{T0}, s{T0}, 20480\ns_add_u32 s{T0}, s{T0}, {WS_Z}\ns_lshr_b32 s{T0+1}, s{sGW}, 1")
        A(f"s_mul_i32 s{sGQ}, s{T0+1}, 12288\ns_add_u32 s{sGQ}, s{sGQ}, s{T0}\ns_lshl_b32 s{sGH}, s{T0+1}, 3\ns_add_u32 s{sGH}, s{sGH}, s{T0}\ns_add_u32 s{sGH}, s{sGH}, 8192")
        A("v_and_b32 v3, 15, v2\nv_lshrrev_b32 v4, 4, v2\nv_lshlrev_b32 v6, 4, v2")
        A(f"s_mul_i32 s{T0}, s{sGW}, 6656\ns_add_u32 s{T0}, s{T0}, {L_WO}\nv_mul_u32_u24 v9, 208, v3\nv_lshl_add_u32 v9, v4, 4, v9\nv_add_u32 v5, s{T0}, v9")
        Lw = A.label("zw"); Lg = A.label("zg")
        A(f"s_cmp_lg_u32 s{sGW}, 0\ns_cbranch_scc1 {Lw}")
        A(f"v_lshrrev_b32 v9, 2, v2\nv_mul_u32_u24 v9, 4224, v9\nv_and_b32 v10, 1, v2\nv_lshl_add_u32 v9, v10, 5, v9\ns_lshr_b32 s{T0}, s{sX}, 1\ns_lshl_b32 s{T0}, s{T0}, 2")
        A(f"v_and_b32 v10, 2, v2\nv_mul_u32_u24 v10, s{T0}, v10\nv_add_u32 v9, v9, v10\nv_add_u32 v12, {WS_FZ}, v9")
        self.lds_wait(C_KVB, 4)
        self.poll(12, tmp=10)
        self.lds_arrive(C_ZF)
        A(f"s_branch {Lg}\n{Lw}:")
        self.lds_wait(C_ZF, 1)
        A(f"{Lg}:")
        self.ts(13)
        vm = Sb(A, "vmcnt", 63)
        def zbase(sunit):
            A(f"s_mul_i32 s54, {sunit}, {ZP}\ns_add_u32 s56, s54, s{sGH}\ns_add_u32 s54, s54, s{sGQ}\ns_add_u32 s55, s54, 4096")
        def zld(b, j):
            if b < 2: vm.op(b, f"buffer_load_dwordx4 {v(ZF+16*b+4*j,4)}, v6, {s(RS,4)}, s{54+b} offen offset:{1024*j} sc1")
            else: vm.op(b, f"buffer_load_dwordx2 {v(ZF+32+2*j,2)}, v6, {s(RS,4)}, s56 offen offset:{1024*j} sc1")
        zbase(f"s{sU}")
        for b in range(3):
            for j in range(4): zld(b, j)
        A(f"s_mov_b32 s{sRET}, 1\ns_cmp_eq_u32 s{sC}, 15\ns_cbranch_scc1 L_CG\nL_A2:")
        if self.cgn[2]:
            self.constgen_setup(); self.constgen(self.cgn[2])
        assert not self.cg
        self.ts(14)
        A("L_A2F:")
        A(f"v_lshl_add_u32 v9, v3, 1, s{sPASS}\nv_cvt_f32_u32 v9, v9\nv_mul_f32 v9, {fl(1/32)}, v9\nv_cvt_f32_u32 v10, v4\nv_mul_f32 v10, v9, v10")
        A(f"s_cmp_eq_u32 s{sPASS}, 0\ns_cselect_b32 s50, 1.0, 0\ns_cselect_b32 s52, 0, 1.0\ns_cmp_eq_u32 s{sU}, 0\ns_cselect_b32 s51, 0, 1.0")
        for p in range(4):
            A(f"v_fmamk_f32 v11, v9, {fl(4*p)}, v10\nv_cos_f32 v12, v11\nv_sin_f32 v13, v11\ns_nop 0")
            A(f"v_mul_f32 v14, s50, v12\nv_mul_f32 v15, s51, v13\nv_fmac_f32 v15, s52, v12\nv_cvt_pk_bf16_f32 v{F+p}, v14, v15")
            A(f"v_mul_f32 v14, s50, v13\nv_mul_f32 v15, s51, v12\nv_mul_f32 v7, s52, v13\nv_sub_f32 v15, v15, v7\nv_cvt_pk_bf16_f32 v{F+4+p}, -v14, v15")
        A("L_A2P:")
        A(f"s_and_b32 s57, s63, s{sI}\ns_add_u32 s53, s{sU}, 1\ns_cmp_eq_u32 s57, 1\ns_cselect_b32 s53, 0, s53\ns_add_u32 s57, s{sI}, 1\ns_cmp_ge_u32 s57, s{sNT}\ns_cselect_b32 s53, 0x4000, s53")
        zbase("s53")
        def tr4(b): return [lambda a_=a_, b_=b_: A(f"v_swap_b32 v{ZF+16*b+4*a_+b_}, v{ZF+16*b+4*b_+a_}") for a_, b_ in ((0, 1), (0, 2), (0, 3), (1, 2), (1, 3), (2, 3))]
        def tr2(): return [lambda a_=a_, b_=b_: A(f"v_swap_b32 v{ZF+32+a_}, v{ZF+32+b_}") for a_, b_ in ((1, 2), (2, 4), (3, 6), (5, 6))]
        def sa(dt): return [lambda c=c, tau=tau: A(f"v_mfma_f32_16x16x32_bf16 {v(D[dt&1]+8*c+4*tau,4)}, {v(ZF+8*dt+4*tau,4)}, {v(F+4*c,4)}, 0") for c in range(2) for tau in range(2)]
        def cvu(dt): return [lambda i=i: A(f"v_cvt_pk_bf16_f32 v{U[dt&1]+i}, v{D[dt&1]+2*i}, v{D[dt&1]+2*i+1}") for i in range(8)]
        def sb(dt):
            def one(et, c):
                d = v((AP, AQ)[c] + 4 * et, 4)
                A(f"v_mfma_f32_16x16x32_bf16 {d}, {v(self.cfrag(dt,et,c),4)}, {v(U[dt&1]+4*c,4)}, {'0' if dt == 0 else d}")
            return [lambda et=et, c=c: one(et, c) for et in range(3) for c in range(2)]
        vm.need(0)
        for f in tr4(0): f()
        vm.need(1); A("s_nop 0")
        weave(sa(0) + sa(1), tr4(1) + [lambda: vm.need(2)] + tr2(), 1)
        for j in range(4): zld(0, j)
        for f in cvu(0): f()
        weave(sa(2) + sb(0), cvu(1), 1)
        weave(sa(3) + sb(1), cvu(2), 1)
        weave(sa(4) + sb(2), cvu(3) + [lambda: zld(1, 0), lambda: zld(1, 1)], 1)
        c4 = cvu(4)
        weave(sb(3), c4[:6], 1)
        c4[6](); c4[7](); zld(1, 2); zld(1, 3)
        weave(sb(4), [lambda j=j: zld(2, j) for j in range(4)], 1)
        assert vm.q == [0] * 4 + [1] * 4 + [2] * 4
        A("s_nop 7")
        for et in range(3):
            for r in range(4):
                A(f"v_add_f32 v{32+4*et+r}, v{AP+4*et+r}, v{AQ+4*et+r}\nv_sub_f32 v{44+4*et+r}, v{AP+4*et+r}, v{AQ+4*et+r}")
            for pm in range(2):
                A(f"ds_write_b128 v5, {v(32+12*pm+4*et,4)} offset:{pm*3328 + 64*et}")
        A(f"s_lshl_b32 s57, s{sI}, 2\ns_add_u32 s57, s57, {C_A2}")
        self.lds_arrive("s57")
        A("v_add_u32 v5, 26624, v5\ns_mov_b32 s58, s44")
        Lx = A.label("a2x")
        self.a2_next(Lx)
        self.ts(15)
        A(f"s_branch L_FIN\n{Lx}:\ns_cmp_eq_u32 s58, 0\ns_cbranch_scc1 L_A2F\ns_cmp_eq_u32 s{sU}, 0\ns_cbranch_scc1 L_A2F\ns_branch L_A2P")

    def a2_store(self):
        A = self.A
        A("L_A2C:")
        self.a2_tasks()
        A(f"s_and_b32 s58, s{sGW}, 1\ns_lshr_b32 s59, s{sGW}, 1\ns_xor_b32 s52, s58, s59\ns_mul_i32 s52, s52, 3328\ns_add_u32 s52, s52, {L_WO}")
        A(f"s_cmp_eq_u32 s59, 0\ns_cselect_b32 s54, 1, -1\ns_mul_i32 s54, s54, {128*2560}")
        A(f"s_mul_i32 s55, s45, 160\ns_sub_u32 s56, {1280-16}, s55\ns_cmp_eq_u32 s58, 0\ns_cselect_b32 s55, s55, s56\ns_cselect_b32 s56, 16, -16")
        for i in range(3):
            A(f"v_add_u32 v9, {64*i}, v2\nv_min_u32 v9, 159, v9\nv_mul_u32_u24 v10, 6554, v9\nv_lshrrev_b32 v10, 16, v10\nv_mul_u32_u24 v11, 10, v10\nv_sub_u32 v11, v9, v11")
            A(f"v_mul_u32_u24 v9, 208, v10\nv_lshl_add_u32 v9, v11, 4, v9\nv_add_u32 v{20+i}, s52, v9\nv_add_u32 v{14+i}, 13312, v{20+i}")
            A(f"v_mul_lo_u32 v10, v10, s54\nv_mul_lo_u32 v11, v11, s56\nv_add3_u32 v{28+i}, v10, v11, s55")
        A("L_A2S:")
        A("s_lshl_b32 s53, s47, 6\ns_add_u32 s53, s53, s44\ns_sub_u32 s57, 2048, s53\ns_cmp_eq_u32 s59, 0\ns_cselect_b32 s53, s53, s57\ns_mul_i32 s53, s53, 2560")
        A(f"s_lshl_b32 s57, s61, 2\ns_add_u32 s57, s57, {C_A2}")
        for i in range(3): A(f"v_add_u32 v{24+i}, s53, v{28+i}")
        Lm = A.label("mir"); Ld = A.label("std")
        A(f"s_cmp_lg_u32 s44, 0\ns_cselect_b32 s{T0}, 0, s59\ns_cmp_lg_u32 s{T0}, 0\ns_cbranch_scc1 {Ld}")
        self.lds_wait("s57", 4)
        A(f"s_cmp_eq_u32 s58, 1\ns_cbranch_scc1 {Lm}")
        for mir in range(2):
            if mir: A(f"{Lm}:")
            lg = Sb(A, "lgkmcnt", 15)
            for i in range(3):
                b = 32 + 16 * i
                for kh in range(2):
                    a = (20, 14)[kh] + i
                    if mir:
                        lg.op(i, f"ds_read2_b32 {v(b+4*kh,2)}, v{a} offset0:1 offset1:2"); lg.op(i, f"ds_read2_b32 {v(b+4*kh+2,2)}, v{a} offset0:3 offset1:4")
                    else:
                        lg.op(i, f"ds_read_b128 {v(b+4*kh,4)}, v{a}")
                    lg.op(i, f"ds_read_b128 {v(b+8+4*kh,4)}, v{a} offset:6656")
            for i in range(3):
                b = 32 + 16 * i
                lg.need(i)
                for r in range(4): A(f"v_add_f32 v{b+r}, v{b+r}, v{b+4+r}\nv_add_f32 v{b+8+r}, v{b+8+r}, v{b+12+r}")
                for r in range(4):
                    if mir: A(f"v_cvt_pk_bf16_f32 v{b+4+r}, v{b+3-r}, v{b+11-r}")
                    else: A(f"v_cvt_pk_bf16_f32 v{b+4+r}, v{b+r}, v{b+8+r}")
                if i == 2: A("s_mov_b32 exec_hi, 0")
                A(f"buffer_store_dwordx4 {v(b+4,4)}, v{24+i}, {s(ROUT,4)}, 0 offen sc1")
            A("s_mov_b32 exec_hi, -1")
            if not mir: A(f"s_branch {Ld}")
        A(f"{Ld}:")
        for i in range(3): A(f"v_add_u32 v{20+i}, 26624, v{20+i}\nv_add_u32 v{14+i}, 26624, v{14+i}")
        self.a2_next("L_A2S")
        self.ts(15)
        A("s_branch L_FIN")

    def outproj(self):
        A = self.A
        A("L_OP:")
        OF, AC, WF = 136, 64, 32
        sHF = 44
        A("v_bfe_u32 v9, v2, 2, 2\nv_bfe_u32 v10, v2, 4, 1\nv_bfe_u32 v11, v2, 1, 1\nv_lshl_add_u32 v10, v10, 1, v11\nv_lshrrev_b32 v11, 1, v9\nv_lshlrev_b32 v11, 2, v11\nv_xor_b32 v10, v10, v11")
        A(f"v_and_b32 v11, 1, v2\nv_lshlrev_b32 v11, 3, v11\nv_lshl_add_u32 v10, v10, 4, v11\nv_lshl_add_u32 v10, v9, 7, v10\nv_add_u32 v10, {L_WO}, v10")
        A(f"v_lshl_add_u32 v5, v19, 9, v10\nv_xor_b32 v6, 64, v5\nv_mul_u32_u24 v11, {40*128}, v19\nv_add_u32 v11, {16*128}, v11\nv_add_u32 v7, v11, v10\nv_xor_b32 v8, 64, v7")
        A(f"s_lshl_b32 s45, s{sRID}, 2\ns_add_u32 s45, s45, s{sGW}\ns_lshl_b32 s45, s45, 9\ns_add_u32 s45, s45, {WS_FO}")
        A(f"s_lshl_b32 s46, s{sGW}, 12\ns_add_u32 s46, s46, {L_STG}\nv_and_b32 v9, 7, v18\nv_lshl_add_u32 v10, v18, 7, s46\nv_lshl_add_u32 v10, v19, 3, v10")
        for sl in range(8): A(f"v_xor_b32 v11, {sl}, v9\nv_lshl_add_u32 v{20+sl}, v11, 4, v10")
        A(f"v_lshrrev_b32 v9, 3, v2\nv_and_b32 v10, 7, v2\nv_xor_b32 v11, v9, v10\nv_lshlrev_b32 v11, 4, v11\nv_lshl_add_u32 v11, v9, 7, v11\nv_add_u32 v28, s46, v11")
        A(f"v_mul_u32_u24 v9, 2560, v9\nv_lshl_add_u32 v29, v10, 4, v9")
        A(f"s_mul_i32 s47, s49, 2560\ns_lshl_b32 s{T0}, s{sC}, 7\ns_add_u32 s47, s47, s{T0}\ns_add_u32 s47, s47, 1280")
        for i in range(32): A(f"v_mov_b32 v{AC+i}, 0")
        if self.opt.get('oa_after_kvb', 1): self.lds_wait(C_KVB, 4)
        if self.opt.get('wo_early', 20) < 20:
            self.wo_issue(self.opt.get('wo_early', 20), 20)
            A("s_waitcnt vmcnt(0)")
        self.lds_arrive(C_ATA)
        self.lds_wait(C_ATA, 4)
        A(f"s_mov_b32 s{sHF}, 0\nL_OPH:")
        def rd(g, t):
            if g < 16: base, row = (5, 6), 20 * g + 4 * (g & 1)
            else: base, row = (7, 8), 80 * (g - 16)
            for h in range(2):
                A(f"ds_read_b64_tr_b16 {v(WF+8*(g&3)+4*t+2*h,2)}, v{base[t]} offset:{(row + (8 if g < 16 else 4)*h)*128}")
        for g in range(3): rd(g, 0); rd(g, 1)
        if self.opt.get('opoll', 's') == 's':
            self.spoll([(8, 64 + 8 * i, "s45", 128 * i) for i in range(4)], list(range(64, 96, 2)))
        else:
            A("v_bfe_u32 v9, v2, 2, 2\nv_and_b32 v10, 3, v2\nv_lshl_add_u32 v9, v9, 4, v10\nv_lshl_add_u32 v12, v9, 3, s45")
            self.poll(12, tmp=10)
        if self.diag:
            L1 = A.label("t"); L2 = A.label("t")
            A(f"s_cmp_eq_u32 s{sHF}, 0\ns_cbranch_scc0 {L1}"); self.ts(16); A(f"s_branch {L2}\n{L1}:"); self.ts(18); A(f"{L2}:")
        A(f"s_lshl_b32 s50, s{sHF}, 20\ns_add_u32 s50, s50, {WS_OF}\ns_lshl_b32 s51, s{sHF}, 18\ns_add_u32 s51, s51, {WS_OT}")
        for g in range(16):
            A(f"s_add_u32 s{T0}, s50, {g*65536}\nbuffer_load_dwordx4 {v(OF+4*g,4)}, v128, {s(RS,4)}, s{T0} offen sc1")
        for u in range(4):
            A(f"s_add_u32 s{T0}, s51, {u*65536}\nbuffer_load_dwordx4 {v(OF+64+4*u,4)}, v128, {s(RS,4)}, s{T0} offen sc1")
        for g in range(20):
            A(f"s_waitcnt vmcnt({19-g}) lgkmcnt({8 if g < 18 else 4*(19-g)})")
            for t in range(2):
                d = v(AC + 16 * t, 16)
                A(f"v_mfma_f32_32x32x16_bf16 {d}, {v(WF+8*(g&3)+4*t,4)}, {v(OF+4*g,4)}, {d}")
                if g + 3 < 20: rd(g + 3, t)
        for r in (5, 6, 7, 8): A(f"v_add_u32 v{r}, 40960, v{r}")
        A(f"s_add_u32 s45, s45, {512*K}")
        if self.diag:
            L1 = A.label("t")
            A(f"s_cmp_eq_u32 s{sHF}, 0\ns_cbranch_scc0 {L1}"); self.ts(17); A(f"{L1}:")
        A(f"s_add_u32 s{sHF}, s{sHF}, 1\ns_cmp_eq_u32 s{sHF}, 1\ns_cbranch_scc1 L_OPH")
        A("s_nop 3")
        self.ts(19)
        for t in range(2):
            for q4 in range(4):
                a = AC + 16 * t + 4 * q4; r = 96 + 2 * (4 * t + q4)
                A(f"v_cvt_pk_bf16_f32 v{r}, v{a}, v{a+1}\nv_cvt_pk_bf16_f32 v{r+1}, v{a+2}, v{a+3}\nds_write_b64 v{20+4*t+q4}, {v(r,2)}")
        A("s_waitcnt lgkmcnt(0)")
        for i in range(4): A(f"ds_read_b128 {v(32+4*i,4)}, v28 offset:{1024*i}")
        for i in range(4):
            A(f"s_add_u32 s{T0}, s47, {8*2560*i}\ns_waitcnt lgkmcnt({3-i})\nbuffer_store_dwordx4 {v(32+4*i,4)}, v29, {s(ROUT,4)}, s{T0} offen sc1")
        self.ts(20)
        A("L_FIN:")
        if self.diag:
            A("s_waitcnt vmcnt(0)")
            self.ts(21)
            A(f"s_lshl_b32 s{T0}, s2, 3\ns_add_u32 s{T0}, s{T0}, s{sW}\ns_lshl_b32 s{T0}, s{T0}, 8\ns_add_u32 s{T0}, s{T0}, {WS_TS}")
            A(f"v_lshlrev_b32 v9, 2, v2\nbuffer_store_dword v{vTS}, v9, {s(RS,4)}, s{T0} offen")
            if 'amp' in self.opt:
                A(f"v_readlane_b32 s50, v{vTS}, 0\nv_readlane_b32 s51, v{vTS}, {self.opt['amp']}\ns_nop 3\ns_cmp_eq_u32 s51, 0\ns_cselect_b32 s51, s50, s51\ns_sub_u32 s51, s51, s50\ns_mul_i32 s51, s51, 20")
                A("L_amp:\ns_memrealtime s[98:99]\ns_waitcnt lgkmcnt(0)\ns_sub_u32 s52, s98, s50\ns_cmp_lt_u32 s52, s51\ns_cbranch_scc1 L_amp")
        A("L_end:\ns_endpgm")
        if self.opt.get('onepass', 1):
            A(f"L_EXACT:\ns_mov_b32 s63, 1\ns_mov_b32 s97, 0")
            A(f"v_cmp_eq_u32 vcc, 1, v19\nv_mov_b32 v7, {hex(BIG)}\nv_mov_b32 v8, 0x3f800000\nv_cndmask_b32 v16, v16, 0, vcc\nv_cndmask_b32 v17, v17, v8, vcc")
            self.pass1_full()
            A("s_branch L_P2")
        A("L_codeend:")

    def build(self):
        A = self.A
        A('.amdgcn_target "amdgcn-amd-amdhsa--gfx950"\n.text')
        self.prologue()
        self.b1_loader()
        self.a1_loader()
        self.l_after_b1()
        self.c_init()
        self.b1_consumer()
        self.a1_consumer()
        self.attention()
        self.a2()
        self.a2_store()
        self.outproj()
        head = f"; fused FNet (factorised DFT) + sliding-window attention, one launch, 256 co-resident workgroups\n; @launch grid=(256,1,1) block=(512,1,1) lds={LDS_BYTES}\n"
        return head + A.text() + '.section .rodata,"a"\n.p2align 6\n' + kernel_desc(NAME, 256, 102, 256)


if __name__ == "__main__":
    out = sys.argv[1]
    diag = len(sys.argv) > 2 and sys.argv[2] == "diag"
    opt = eval(sys.argv[3]) if len(sys.argv) > 3 else {}
    open(out, "w").write(G(diag, opt).build())
```
